```python
import torch

def _softmax(x, axis=-1):
    return torch.softmax(x, dim=axis)

def _gelu(x):
    return torch.nn.functional.gelu(x, approximate='tanh')

def _silu(x):
    return torch.nn.functional.silu(x)

def _sigmoid(x):
    return torch.sigmoid(x)

def _layernorm(x, axis=-1, eps=1e-05):
    m = x.mean(dim=axis, keepdim=True)
    v = x.var(dim=axis, keepdim=True, unbiased=False)
    return (x - m) / torch.sqrt(v + eps)

def _scatter_add(tgt, idx, src, axis=0):
    return tgt.clone().index_add_(axis, idx, src)

def _segment_sum(src, seg, n):
    out = torch.zeros((n,) + src.shape[1:], dtype=src.dtype)
    return out.index_add_(0, seg, src)

def _pad(x, pw):
    flat = tuple((v for pair in reversed(pw) for v in pair))
    return torch.nn.functional.pad(x, flat)
kernel_name = 'interleave_layers__ssm_conv_h3__mixer_gmlp__prompt'

def setup_inputs():

    _w = lambda a: (lambda t: t.to(torch.bfloat16) if t.is_floating_point() else t)(torch.as_tensor(a))

    def _A_setup():
        B, S, D = (1, 2048, 640)
        ks = 4
        return {'q': _w((lambda *s: torch.randn(*s, dtype=torch.bfloat16) * 0.05)(B, S, D)), 'k': _w((lambda *s: torch.randn(*s, dtype=torch.bfloat16) * 0.8)(B, S, D)), 'v': _w((lambda *s: torch.randn(*s, dtype=torch.bfloat16) * 0.8)(B, S, D)), 'shift_k': _w((lambda *s: torch.randn(*s, dtype=torch.bfloat16) * 0.8)(D, ks) * 0.5), 'ssm_k': _w((lambda *s: torch.randn(*s, dtype=torch.bfloat16) * 0.8)(D, S) * (1.0 / S ** 0.5)), 'ssm_D': _w((lambda *s: torch.randn(*s, dtype=torch.bfloat16) * 0.8)(D))}
    _A_in = _A_setup()

    def _B_setup():
        B, S, D, F = (1, 2048, 640, 1536)
        Fh = F // 2
        return {'x': _w((lambda *s: torch.randn(*s, dtype=torch.bfloat16) * 0.05)(B, S, D)), 'w_in': _w((lambda *s: torch.randn(*s, dtype=torch.bfloat16) * 0.4)(D, 2 * Fh)), 'w_sp': _w(0.01 * (lambda *s: torch.randn(*s, dtype=torch.bfloat16) * 0.4)(S, S)), 'b_sp': _w(1.0 + 0.01 * (lambda *s: torch.randn(*s, dtype=torch.bfloat16) * 0.1)(S)), 'w_out': _w((lambda *s: torch.randn(*s, dtype=torch.bfloat16) * 0.1)(Fh, D))}
    _B_in = _B_setup()
    return {'A_q': _A_in['q'], 'A_k': _A_in['k'], 'A_v': _A_in['v'], 'A_shift_k': _A_in['shift_k'], 'A_ssm_k': _A_in['ssm_k'], 'A_ssm_D': _A_in['ssm_D'], 'B_x': _B_in['x'], 'B_w_in': _B_in['w_in'], 'B_w_sp': _B_in['w_sp'], 'B_b_sp': _B_in['b_sp'], 'B_w_out': _B_in['w_out']}

def reference(A_q, A_k, A_v, A_shift_k, A_ssm_k, A_ssm_D, B_x, B_w_in, B_w_sp, B_b_sp, B_w_out):

    def _A_ref(q, k, v, shift_k, ssm_k, ssm_D):
        B, S, D = q.shape
        ks = shift_k.shape[-1]
        k_pad = _pad(k, ((0, 0), (ks - 1, 0), (0, 0)))
        k_shift = torch.zeros_like(k)
        for t in range(ks):
            k_shift = k_shift + k_pad[:, t:t + S, :] * shift_k[:, ks - 1 - t][None, None, :]
        kv = k_shift * v
        L = 2 * S
        kv_pad = _pad(kv, ((0, 0), (0, S), (0, 0)))
        kf_pad = _pad(ssm_k, ((0, 0), (0, S)))
        kv_f = (lambda x, axes=(-2, -1): torch.fft.rfft2(x.float(), dim=axes))(kv_pad[:, None, :, :], axes=(1, 2))
        kf_f = (lambda x, axes=(-2, -1): torch.fft.rfft2(x.float(), dim=axes))(kf_pad[:, None, :], axes=(1, 2))
        kf_f = (lambda x, *d: x.permute(*d))(kf_f, 1, 2, 0)
        y_f = kv_f * kf_f[None, :, :, :]
        y = (lambda x, s, axes=(-2, -1): torch.fft.irfft2(x, s=s, dim=axes).to(torch.bfloat16))(y_f, (1, L), axes=(1, 2))[:, 0, :S, :]
        y = y + kv * ssm_D[None, None, :]
        return q * y

    def _B_ref(x, w_in, w_sp, b_sp, w_out):
        B, S, D = x.shape
        F = w_in.shape[-1]
        Fh = F // 2
        z = _gelu(torch.einsum('bsd,df->bsf', x, w_in))
        z1 = z[..., :Fh].clone()
        z2 = _layernorm(z[..., Fh:], axis=-1)
        g = torch.einsum('ts,bsf->btf', w_sp, z2) + b_sp[None, :, None]
        return torch.einsum('bsf,fd->bsd', z1 * g, w_out)
    x = A_q
    x = x + _A_ref(_layernorm(x, axis=-1), A_k, A_v, A_shift_k, A_ssm_k, A_ssm_D)
    x = x + _B_ref(_layernorm(x, axis=-1), B_w_in, B_w_sp, B_b_sp, B_w_out)
    x = x + _A_ref(_layernorm(x, axis=-1), A_k, A_v, A_shift_k, A_ssm_k, A_ssm_D)
    x = x + _B_ref(_layernorm(x, axis=-1), B_w_in, B_w_sp, B_b_sp, B_w_out)
    return x
```

```python
import layout as L
from gen import KA

def magic_div(d, maxp):
    for s in range(10, 25):
        m = -(-(1 << s) // d)
        if m < (1 << 24) and all((p * m) >> s == p // d for p in range(maxp)) and maxp * m < (1 << 32):
            return m, s
    raise Exception("no magic")

def gen_gemm(a, K, BM, BN, KDIM, NST, WM, WN, MT, NT, Asrc, Bsrc, epi):
    assert WM * WN == 4
    TM = BM // WM // 16
    TN = BN // WN // 16
    LA = BM // 32
    LB = -(-BN // 32)
    LW = LA + LB
    AIMG = BM * 128
    BIMG = LB * 4 * 1024
    STAGE = AIMG + BIMG
    NK = KDIM // 64
    E = f"L_{K}_end"
    a.begin(K)
    a(f"s_cmp_ge_u32 s2, {MT*NT}")
    a(f"s_cbranch_scc1 {E}")
    a(f"s_load_dwordx2 s[4:5], s[0:1], {KA['ws']}")
    a(f"s_load_dwordx4 s[28:31], s[0:1], {KA['w_sp']}")
    a(f"s_load_dwordx2 s[32:33], s[0:1], {KA['out']}")
    NTG = NT // 2
    MTG = MT // 4
    assert NTG * MTG == 32 and (NTG & (NTG - 1)) == 0
    lg = NTG.bit_length() - 1
    a("s_and_b32 s6, s2, 7")
    a("s_lshr_b32 s7, s2, 3")
    a("s_lshr_b32 s22, s6, 1")
    a(f"s_mul_i32 s22, s22, {MTG}")
    a(f"s_lshr_b32 s3, s7, {lg}")
    a("s_add_u32 s22, s22, s3")
    a("s_and_b32 s23, s6, 1")
    a(f"s_lshl_b32 s23, s23, {lg}")
    a(f"s_and_b32 s3, s7, {NTG-1}")
    a("s_add_u32 s23, s23, s3")
    a("v_and_b32 v1, 63, v0")
    a("v_and_b32 v2, 15, v0")
    a("v_bfe_u32 v3, v0, 4, 2")
    a("v_lshrrev_b32 v4, 6, v0")
    a("s_nop 0")
    a("v_readfirstlane_b32 s21, v4")
    a(f"s_mul_i32 s34, s22, {BM}")
    a(f"s_mul_i32 s35, s23, {BN}")
    a("s_waitcnt lgkmcnt(0)")
    vDA = list(range(10, 10 + LA))
    vDB = list(range(14, 14 + LB))
    vRA0, vRA1, vRB, vA0c, vA1c, vBc = 18, 19, 20, 21, 22, 23
    F0 = 24
    NF = (TM + TN) * 4
    F1 = F0 + NF
    ACC = F1 + NF
    NACC = TM * TN * 4
    EP = ACC + NACC
    wm_rows = BM // WM
    wn_cols = BN // WN
    if WN == 2:
        a("s_lshr_b32 s36, s21, 1")
        a("s_and_b32 s37, s21, 1")
    else:
        a("s_mov_b32 s36, s21")
        a("s_mov_b32 s37, 0")
    a(f"s_mul_i32 s36, s36, {wm_rows}")
    a(f"s_mul_i32 s37, s37, {wn_cols}")
    if Asrc[0] == 'C':
        _, off, RT = Asrc
        a.srd(8, 4, 5, RT * KDIM * 2, off)
        stepA = 8 * RT * 16
        for q in range(LA):
            a(f"s_mul_i32 s3, s21, {LA*64}")
            a(f"s_add_u32 s3, s3, {q*64}")
            a("v_add_u32 v5, s3, v1")
            lb = BM.bit_length() - 1
            assert BM == 1 << lb
            a(f"v_lshrrev_b32 v6, {lb}, v5")
            a(f"v_and_b32 v5, {BM-1}, v5")
            a(f"v_mul_u32_u24 v6, {RT}, v6")
            a("v_add3_u32 v5, v5, v6, s34")
            a(f"v_lshlrev_b32 v{vDA[q]}, 4, v5")
        a(f"v_mul_u32_u24 v5, {BM}, v3")
        a("v_add3_u32 v5, v5, v2, s36")
        a(f"v_lshlrev_b32 v{vRA0}, 4, v5")
        def a_off(kk, tm): return kk * 4 * BM * 16 + tm * 256
        def a_reg(kk): return vA0c
        swz = False
    else:
        _, rowbytes = Asrc
        a.srd(8, 28, 29, 2048 * 2048 * 2)
        stepA = 128
        for q in range(LA):
            a(f"s_mul_i32 s3, s21, {LA*64}")
            a(f"s_add_u32 s3, s3, {q*64}")
            a("v_add_u32 v5, s3, v1")
            a("v_lshrrev_b32 v6, 3, v5")
            a("v_and_b32 v5, 7, v5")
            a("v_bfe_u32 v7, v6, 1, 3")
            a("v_xor_b32 v5, v5, v7")
            a("v_add_u32 v6, s34, v6")
            a(f"v_mul_u32_u24 v6, {rowbytes}, v6")
            a(f"v_lshl_add_u32 v{vDA[q]}, v5, 4, v6")
        a("v_lshrrev_b32 v5, 1, v2")
        a("v_xor_b32 v5, v5, v3")
        a("v_add_u32 v6, s36, v2")
        a("v_lshlrev_b32 v6, 7, v6")
        a(f"v_lshl_add_u32 v{vRA0}, v5, 4, v6")
        a(f"v_xor_b32 v{vRA1}, 64, v{vRA0}")
        def a_off(kk, tm): return tm * 2048
        def a_reg(kk): return vA0c if kk == 0 else vA1c
        swz = True
    _, offB, RTB = Bsrc
    a.srd(12, 4, 5, RTB * KDIM * 2, offB)
    stepB = 8 * RTB * 16
    mg, sh = magic_div(BN, LB * 256)
    for q in range(LB):
        a(f"s_mul_i32 s3, s21, {LB*64}")
        a(f"s_add_u32 s3, s3, {q*64}")
        a("v_add_u32 v5, s3, v1")
        a(f"v_mul_u32_u24 v6, {mg}, v5")
        a(f"v_lshrrev_b32 v6, {sh}, v6")
        a(f"v_mul_u32_u24 v7, {BN}, v6")
        a("v_sub_u32 v7, v5, v7")
        a(f"v_mul_u32_u24 v6, {RTB}, v6")
        a("v_add3_u32 v7, v7, v6, s35")
        a(f"v_lshlrev_b32 v{vDB[q]}, 4, v7")
        if BN * 8 < (LB * 4) * 64:
            a(f"v_cmp_le_u32 vcc, {BN*8}, v5")
            a("v_mov_b32 v6, 0x7ffffff0")
            a("s_nop 1")
            a(f"v_cndmask_b32 v{vDB[q]}, v{vDB[q]}, v6, vcc")
    a(f"v_mul_u32_u24 v5, {BN}, v3")
    a("v_add3_u32 v5, v5, v2, s37")
    a(f"v_lshlrev_b32 v5, 4, v5")
    a(f"v_add_u32 v{vRB}, {AIMG}, v5")
    def b_off(kk, tn): return kk * 4 * BN * 16 + tn * 256
    epi.pre(a, dict(TM=TM, TN=TN, EP=EP, BM=BM, BN=BN))
    npre = epi.npre
    a(f"s_mul_i32 s24, s21, {LA*1024}")
    a(f"s_mul_i32 s25, s21, {LB*1024}")
    a(f"s_add_u32 s25, s25, {AIMG}")
    a("s_mov_b32 s16, 0")
    a("s_mov_b32 s17, 0")
    a("s_mov_b32 s18, 0")
    def dma_stage():
        a("s_add_u32 s26, s18, s24")
        a("s_add_u32 s27, s18, s25")
        for q in range(LA):
            a(f"s_add_u32 m0, s26, {q*1024}")
            a("s_nop 0")
            a(f"buffer_load_dwordx4 v{vDA[q]}, s[8:11], s16 offen lds")
        for q in range(LB):
            a(f"s_add_u32 m0, s27, {q*1024}")
            a("s_nop 0")
            a(f"buffer_load_dwordx4 v{vDB[q]}, s[12:15], s17 offen lds")
        a(f"s_add_u32 s16, s16, {stepA}")
        a(f"s_add_u32 s17, s17, {stepB}")
        a(f"s_add_u32 s18, s18, {STAGE}")
        a(f"s_cmp_eq_u32 s18, {NST*STAGE}")
        a("s_cselect_b32 s18, 0, s18")
    for st in range(NST):
        dma_stage()
    for i in range(NACC):
        a(f"v_mov_b32 v{ACC+i}, 0")
    def set_addr():
        a(f"v_add_u32 v{vA0c}, s19, v{vRA0}")
        if swz:
            a(f"v_add_u32 v{vA1c}, s19, v{vRA1}")
        a(f"v_add_u32 v{vBc}, s19, v{vRB}")
    def reads(kk, F):
        for tm in range(TM):
            r = F + tm * 4
            a(f"ds_read_b128 v[{r}:{r+3}], v{a_reg(kk)} offset:{a_off(kk, tm)}")
        for tn in range(TN):
            r = F + TM * 4 + tn * 4
            a(f"ds_read_b128 v[{r}:{r+3}], v{vBc} offset:{b_off(kk, tn)}")
    def mfmas(F):
        for tm in range(TM):
            for tn in range(TN):
                c = ACC + (tm * TN + tn) * 4
                ra = F + tm * 4
                rb = F + TM * 4 + tn * 4
                a(f"v_mfma_f32_16x16x32_bf16 v[{c}:{c+3}], v[{rb}:{rb+3}], v[{ra}:{ra+3}], v[{c}:{c+3}]")
    a("s_mov_b32 s19, 0")
    a(f"s_mov_b32 s20, {NK}")
    set_addr()
    a(f"s_waitcnt vmcnt({(NST-1)*LW})")
    a("s_barrier")
    reads(0, F0)
    LP = f"L_{K}_loop"
    a.label(LP)
    reads(1, F1)
    a(f"s_waitcnt lgkmcnt({TM+TN})")
    mfmas(F0)
    a(f"s_waitcnt vmcnt({(NST-2)*LW}) lgkmcnt(0)")
    a("s_barrier")
    dma_stage()
    a(f"s_add_u32 s19, s19, {STAGE}")
    a(f"s_cmp_eq_u32 s19, {NST*STAGE}")
    a("s_cselect_b32 s19, 0, s19")
    set_addr()
    reads(0, F0)
    mfmas(F1)
    a("s_sub_u32 s20, s20, 1")
    a("s_cmp_lg_u32 s20, 0")
    a(f"s_cbranch_scc1 {LP}")
    a("s_nop 7")
    a("s_nop 1")
    a("s_waitcnt vmcnt(0) lgkmcnt(0)")
    epi.post(a, dict(TM=TM, TN=TN, EP=EP, ACC=ACC, BM=BM, BN=BN))
    a.label(E)
    a.end(K, EP + epi.nregs)
    return NST * STAGE

def unpack(a, lo, hi, src):
    a(f"v_lshlrev_b32 v{lo}, 16, v{src}")
    a(f"v_and_b32 v{hi}, 0xffff0000, v{src}")

def rnd2(a, x0, x1, tmp):
    a(f"v_cvt_pk_bf16_f32 v{tmp}, v{x0}, v{x1}")
    unpack(a, x0, x1, tmp)

class Epi1:
    npre = 0
    nregs = 12
    def pre(self, a, c):
        pass
    def post(self, a, c):
        TM, TN, EP, ACC = c['TM'], c['TN'], c['EP'], c['ACC']
        a("s_cmp_lt_u32 s23, 8")
        a(f"s_mov_b32 s3, {L.Z2}")
        a(f"s_cselect_b32 s3, {L.Z1}, s3")
        a("s_add_u32 s40, s4, s3")
        a("s_addc_u32 s41, s5, 0")
        a(f"s_mov_b32 s42, {2048*768*2}")
        a("s_mov_b32 s43, 0x00020000")
        a("s_and_b32 s3, s23, 7")
        a("s_mul_i32 s3, s3, 96")
        a("s_add_u32 s3, s3, s37")
        a("s_add_u32 s6, s34, s36")
        a("v_add_u32 v5, s6, v2")
        a("v_mul_u32_u24 v5, 1536, v5")
        a("v_lshl_add_u32 v6, v3, 2, s3")
        a("v_lshl_add_u32 v5, v6, 1, v5")
        import struct
        c1 = struct.unpack("<I", struct.pack("<f", -2.302208198))[0]
        c2 = struct.unpack("<I", struct.pack("<f", -0.1029432397))[0]
        a(f"s_mov_b32 s44, {c1:#x}")
        a(f"s_mov_b32 s45, {c2:#x}")
        a(f"v_mov_b32 v{EP+10}, s44")
        T = EP
        for tm in range(TM):
            for tn in range(TN):
                cc = ACC + (tm * TN + tn) * 4
                rnd2(a, cc, cc + 1, T + 8)
                rnd2(a, cc + 2, cc + 3, T + 8)
                for i in range(4):
                    a(f"v_mul_f32 v{T+i}, v{cc+i}, v{cc+i}")
                for i in range(4):
                    a(f"v_fma_f32 v{T+i}, v{T+i}, s45, v{EP+10}")
                for i in range(4):
                    a(f"v_mul_f32 v{T+i}, v{T+i}, v{cc+i}")
                for i in range(4):
                    a(f"v_exp_f32 v{T+i}, v{T+i}")
                for i in range(4):
                    a(f"v_add_f32 v{T+i}, 1.0, v{T+i}")
                for i in range(4):
                    a(f"v_rcp_f32 v{T+i}, v{T+i}")
                for i in range(4):
                    a(f"v_mul_f32 v{T+i}, v{T+i}, v{cc+i}")
                a(f"v_cvt_pk_bf16_f32 v{cc}, v{T}, v{T+1}")
                a(f"v_cvt_pk_bf16_f32 v{cc+1}, v{T+2}, v{T+3}")
                if tm > 0 and tn == 0:
                    a(f"v_add_u32 v5, {16*1536}, v5")
                a(f"buffer_store_dwordx2 v[{cc}:{cc+1}], v5, s[40:43], 0 offen offset:{tn*32}")

class Epi2:
    nregs = 32
    npre = 0
    def pre(self, a, c):
        TM, TN, EP = c['TM'], c['TN'], c['EP']
        a.srd(40, 4, 5, 2048 * 768 * 2, L.Z1)
        a.srd(44, 30, 31, 2048 * 2)
        a("s_add_u32 s3, s35, s37")
        a("s_add_u32 s6, s34, s36")
        a("v_add_u32 v8, s6, v2")
        a("v_mul_u32_u24 v5, 1536, v8")
        a("v_lshl_add_u32 v6, v3, 2, s3")
        a("v_lshl_add_u32 v5, v6, 1, v5")
        a("v_lshlrev_b32 v7, 1, v8")
        for tm in range(TM):
            if tm > 0:
                a(f"v_add_u32 v5, {16*1536}, v5")
            for tn in range(TN):
                r = EP + (tm * TN + tn) * 2
                a(f"buffer_load_dwordx2 v[{r}:{r+1}], v5, s[40:43], 0 offen offset:{tn*32}")
            a(f"buffer_load_ushort v{EP+TM*TN*2+tm}, v7, s[44:47], 0 offen offset:{tm*32}")
        a("v_lshrrev_b32 v6, 3, v6")
        a("v_lshlrev_b32 v6, 15, v6")
        a("v_lshl_add_u32 v6, v8, 4, v6")
        a("v_and_b32 v7, 1, v3")
        a("v_lshl_add_u32 v9, v7, 3, v6")
    def post(self, a, c):
        TM, TN, EP, ACC = c['TM'], c['TN'], c['EP'], c['ACC']
        a.srd(40, 4, 5, 2048 * 768 * 2, L.HB)
        T = EP + TM * TN * 2 + TM
        for tm in range(TM):
            b = EP + TM * TN * 2 + tm
            a(f"v_lshlrev_b32 v{b}, 16, v{b}")
            for tn in range(TN):
                cc = ACC + (tm * TN + tn) * 4
                z = EP + (tm * TN + tn) * 2
                rnd2(a, cc, cc + 1, T + 4)
                rnd2(a, cc + 2, cc + 3, T + 4)
                for i in range(4):
                    a(f"v_add_f32 v{cc+i}, v{cc+i}, v{b}")
                rnd2(a, cc, cc + 1, T + 4)
                rnd2(a, cc + 2, cc + 3, T + 4)
                unpack(a, T, T + 1, z)
                unpack(a, T + 2, T + 3, z + 1)
                for i in range(4):
                    a(f"v_mul_f32 v{cc+i}, v{cc+i}, v{T+i}")
                a(f"v_cvt_pk_bf16_f32 v{cc}, v{cc}, v{cc+1}")
                a(f"v_cvt_pk_bf16_f32 v{cc+1}, v{cc+2}, v{cc+3}")
                a(f"v_add_u32 v{T+5}, {tn*2*32768 + tm*256}, v9")
                a(f"buffer_store_dwordx2 v[{cc}:{cc+1}], v{T+5}, s[40:43], 0 offen")

class Epi3:
    nregs = 24
    npre = 0
    def __init__(self, final):
        self.final = final
    def pre(self, a, c):
        TM, TN, EP = c['TM'], c['TN'], c['EP']
        a.srd(40, 4, 5, 2048 * 640 * 2, L.X1)
        a("s_add_u32 s3, s35, s37")
        a("s_add_u32 s6, s34, s36")
        a("v_add_u32 v8, s6, v2")
        a("v_mul_u32_u24 v5, 1280, v8")
        a("v_lshl_add_u32 v6, v3, 2, s3")
        a("v_lshl_add_u32 v9, v6, 1, v5")
        for tm in range(TM):
            for tn in range(TN):
                r = EP + (tm * TN + tn) * 2
                assert tm == 0
                a(f"buffer_load_dwordx2 v[{r}:{r+1}], v9, s[40:43], 0 offen offset:{tn*32}")
    def post(self, a, c):
        TM, TN, EP, ACC = c['TM'], c['TN'], c['EP'], c['ACC']
        if self.final:
            a.srd(40, 32, 33, 2048 * 640 * 2)
        else:
            a.srd(40, 4, 5, 2048 * 640 * 2, L.X2)
        T = EP + TM * TN * 2
        for tm in range(TM):
            for tn in range(TN):
                cc = ACC + (tm * TN + tn) * 4
                z = EP + (tm * TN + tn) * 2
                rnd2(a, cc, cc + 1, T + 4)
                rnd2(a, cc + 2, cc + 3, T + 4)
                unpack(a, T, T + 1, z)
                unpack(a, T + 2, T + 3, z + 1)
                for i in range(4):
                    a(f"v_add_f32 v{cc+i}, v{cc+i}, v{T+i}")
                a(f"v_cvt_pk_bf16_f32 v{cc}, v{cc}, v{cc+1}")
                a(f"v_cvt_pk_bf16_f32 v{cc+1}, v{cc+2}, v{cc+3}")
                a(f"buffer_store_dwordx2 v[{cc}:{cc+1}], v9, s[40:43], 0 offen offset:{tn*32}")

def gen_gemm1(a, K):
    return gen_gemm(a, K, 128, 96, 640, 5, 2, 2, 16, 16, ('C', L.XNB, 2048), ('C', L.WINB, 1536), Epi1())
def gen_gemm2(a, K):
    return gen_gemm(a, K, 64, 96, 2048, 7, 2, 2, 32, 8, ('R', 4096), ('C', L.Z2NB, 768), Epi2())
def gen_gemm3(a, K, final):
    return gen_gemm(a, K, 64, 80, 768, 7, 4, 1, 32, 8, ('C', L.HB, 2048), ('C', L.WOUTB, 640), Epi3(final))
```

```python
import sys
import layout as L

NAME = "interleave_layers__ssm_conv_h3__mixer_gmlp__prompt"
KA = dict(A_q=0, A_k=8, A_v=16, shift_k=24, ssm_k=32, ssm_D=40, B_x=48, w_in=56, w_sp=64, b_sp=72, w_out=80,
          out=88, dbg=96, ws=104)

class Asm:
    def __init__(self):
        self.lines = []
        self.kernels = []
        self.launches = []
        self.uid = 0
    def __call__(self, s):
        for ln in s.strip("\n").split("\n"):
            ln = ln.strip()
            if ln:
                self.lines.append("    " + ln)
    def label(self, l):
        self.lines.append(l + ":")
    def newlabel(self, base):
        self.uid += 1
        return f"L_{base}_{self.uid}"
    def begin(self, label):
        self.lines += [f".globl {label}", ".p2align 8", f".type {label},@function", f"{label}:"]
    def end(self, label, vgpr, sgpr=102):
        self.lines.append("    s_endpgm")
        self.kernels.append((label, vgpr, sgpr))
    def launch(self, label, grid, block, lds):
        self.launches.append((label, grid, block, lds))
    def srd(self, d, base_lo, base_hi, nbytes, add=0):
        if add:
            self(f"s_add_u32 s{d}, s{base_lo}, {add}")
            self(f"s_addc_u32 s{d+1}, s{base_hi}, 0")
        else:
            self(f"s_mov_b32 s{d}, s{base_lo}")
            self(f"s_mov_b32 s{d+1}, s{base_hi}")
        self(f"s_mov_b32 s{d+2}, {nbytes}")
        self(f"s_mov_b32 s{d+3}, 0x00020000")
    def text(self):
        hdr = open(f"cdna_kernels/{NAME}.s.ref").read().split("; Override launch geometry")[0]
        out = [hdr.rstrip("\n")]
        for (label, g, b, lds) in self.launches:
            out.append(f"; @launch kernel={label} grid=({g},1,1) block=({b},1,1) lds={lds}")
        out.append('.amdgcn_target "amdgcn-amd-amdhsa--gfx950"')
        out.append(".text")
        out += self.lines
        out.append('.section .rodata,"a"')
        for (label, vgpr, sgpr) in self.kernels:
            acc = (vgpr + 3) // 4 * 4
            out += [".p2align 6", f".amdhsa_kernel {label}",
                    f"  .amdhsa_next_free_vgpr {vgpr}", f"  .amdhsa_next_free_sgpr {sgpr}",
                    f"  .amdhsa_accum_offset {acc}", "  .amdhsa_group_segment_fixed_size 0",
                    "  .amdhsa_kernarg_size 112", "  .amdhsa_user_sgpr_count 2",
                    "  .amdhsa_user_sgpr_kernarg_segment_ptr 1", "  .amdhsa_system_sgpr_workgroup_id_x 1",
                    ".end_amdhsa_kernel"]
        return "\n".join(out) + "\n"

a = Asm()

def unpack(dst_lo, dst_hi, src):
    a(f"v_lshlrev_b32 v{dst_lo}, 16, v{src}")
    a(f"v_and_b32 v{dst_hi}, 0xffff0000, v{src}")

def rnd2(x0, x1, tmp):
    a(f"v_cvt_pk_bf16_f32 v{tmp}, v{x0}, v{x1}")
    unpack(x0, x1, tmp)

def gen_prep():
    K = "prep_kernel"
    a.begin(K)
    a("s_cmp_ge_u32 s2, 520")
    a("s_cbranch_scc1 L_prep_end")
    a(f"s_load_dwordx2 s[4:5], s[0:1], {KA['ws']}")
    a("s_mov_b32 s30, 0x05040100")
    a("s_mov_b32 s31, 0x07060302")
    a("s_cmp_lt_u32 s2, 160")
    a("s_cbranch_scc0 L_prep_w")
    a(f"s_load_dwordx4 s[24:27], s[0:1], {KA['A_k']}")
    a(f"s_load_dwordx2 s[28:29], s[0:1], {KA['shift_k']}")
    a("s_lshl_b32 s3, s2, 8")
    a("v_add_u32 v1, s3, v0")
    a("v_mul_u32_u24 v2, 52429, v1")
    a("v_lshrrev_b32 v2, 24, v2")
    a("v_mul_u32_u24 v3, 320, v2")
    a("v_sub_u32 v1, v1, v3")
    a("s_waitcnt lgkmcnt(0)")
    a.srd(8, 24, 25, 2048 * 640 * 2)
    a.srd(12, 26, 27, 2048 * 640 * 2)
    a.srd(16, 28, 29, 640 * 4 * 2)
    a.srd(20, 4, 5, 640 * 2048 * 2, L.URT)
    a("v_mul_u32_u24 v3, 20480, v2")
    a("v_lshl_add_u32 v3, v1, 2, v3")
    a("v_lshlrev_b32 v4, 4, v1")
    a("buffer_load_dwordx4 v[48:51], v4, s[16:19], 0 offen")
    for i in range(19):
        off = (i - 3) * 1280
        a(f"v_add_u32 v4, {off & 0xffffffff}, v3")
        a(f"buffer_load_dword v{10+i}, v4, s[8:11], 0 offen")
    for i in range(16):
        a(f"v_add_u32 v4, {i*1280}, v3")
        a(f"buffer_load_dword v{30+i}, v4, s[12:15], 0 offen")
    a("s_waitcnt vmcnt(16)")
    unpack(92, 93, 48); unpack(94, 95, 49); unpack(96, 97, 50); unpack(98, 99, 51)
    for i in range(19):
        unpack(52 + i, 72 + i, 10 + i)
    a("s_waitcnt vmcnt(0)")
    for i in range(16):
        a(f"v_mul_f32 v100, v{52+i}, v95")
        a(f"v_mul_f32 v101, v{72+i}, v99")
        rnd2(100, 101, 104)
        for j in (2, 1, 0):
            ki = i + 3 - j
            a(f"v_mul_f32 v102, v{52+ki}, v{92+j}")
            a(f"v_mul_f32 v103, v{72+ki}, v{96+j}")
            rnd2(102, 103, 104)
            a("v_add_f32 v100, v100, v102")
            a("v_add_f32 v101, v101, v103")
            rnd2(100, 101, 104)
        unpack(102, 103, 30 + i)
        a("v_mul_f32 v100, v100, v102")
        a("v_mul_f32 v101, v101, v103")
        a(f"v_cvt_pk_bf16_f32 v{110+i}, v100, v101")
    for m in range(8):
        a(f"v_perm_b32 v{128+m}, v{110+14-2*m}, v{110+15-2*m}, s30")
        a(f"v_perm_b32 v{136+m}, v{110+14-2*m}, v{110+15-2*m}, s31")
    a("v_lshlrev_b32 v4, 13, v1")
    a("v_lshlrev_b32 v5, 5, v2")
    a("v_sub_u32 v4, v4, v5")
    a("v_add_u32 v4, 4064, v4")
    a("v_add_u32 v5, 4096, v4")
    a("buffer_store_dwordx4 v[128:131], v4, s[20:23], 0 offen")
    a("buffer_store_dwordx4 v[132:135], v4, s[20:23], 0 offen offset:16")
    a("buffer_store_dwordx4 v[136:139], v5, s[20:23], 0 offen")
    a("buffer_store_dwordx4 v[140:143], v5, s[20:23], 0 offen offset:16")
    a("s_branch L_prep_end")
    a.label("L_prep_w")
    a("s_cmp_lt_u32 s2, 400")
    a("s_cbranch_scc0 L_prep_c")
    a(f"s_load_dwordx2 s[24:25], s[0:1], {KA['w_in']}")
    a("s_sub_u32 s3, s2, 160")
    a("s_mul_i32 s6, s3, 21846")
    a("s_lshr_b32 s6, s6, 16")
    a("s_mul_i32 s7, s6, 3")
    a("s_sub_u32 s7, s3, s7")
    a("s_lshl_b32 s7, s7, 8")
    a("v_add_u32 v1, s7, v0")
    a("v_mov_b32 v2, s6")
    a("s_waitcnt lgkmcnt(0)")
    a.srd(8, 24, 25, 640 * 1536 * 2)
    a.srd(20, 4, 5, 640 * 1536 * 2, L.WINB)
    a("s_mov_b32 s34, 3072")
    a("s_mov_b32 s35, 1536")
    a("s_branch L_prep_wc")
    a.label("L_prep_c")
    a(f"s_load_dwordx2 s[24:25], s[0:1], {KA['w_out']}")
    a("s_sub_u32 s3, s2, 400")
    a("s_lshl_b32 s3, s3, 8")
    a("v_add_u32 v1, s3, v0")
    a("v_mul_u32_u24 v2, 52429, v1")
    a("v_lshrrev_b32 v2, 24, v2")
    a("v_mul_u32_u24 v3, 320, v2")
    a("v_sub_u32 v1, v1, v3")
    a("s_waitcnt lgkmcnt(0)")
    a.srd(8, 24, 25, 768 * 640 * 2)
    a.srd(20, 4, 5, 768 * 640 * 2, L.WOUTB)
    a("s_mov_b32 s34, 1280")
    a("s_mov_b32 s35, 640")
    a.label("L_prep_wc")
    a("v_lshlrev_b32 v3, 3, v2")
    a("v_mul_lo_u32 v3, v3, s34")
    a("v_lshl_add_u32 v3, v1, 2, v3")
    for i in range(8):
        a(f"buffer_load_dword v{10+i}, v3, s[8:11], 0 offen")
        if i < 7:
            a("v_add_u32 v3, s34, v3")
    a("v_mul_lo_u32 v4, v2, s35")
    a("v_lshl_add_u32 v4, v1, 1, v4")
    a("v_lshlrev_b32 v4, 4, v4")
    a("s_waitcnt vmcnt(0)")
    for m in range(4):
        a(f"v_perm_b32 v{20+m}, v{10+2*m+1}, v{10+2*m}, s30")
        a(f"v_perm_b32 v{24+m}, v{10+2*m+1}, v{10+2*m}, s31")
    a("buffer_store_dwordx4 v[20:23], v4, s[20:23], 0 offen")
    a("buffer_store_dwordx4 v[24:27], v4, s[20:23], 0 offen offset:16")
    a.label("L_prep_end")
    a.end(K, 144)
    a.launch(K, 520, 256, 0)

def gen_conv():
    K = "conv_kernel"
    CS = 4160
    UOFF = 8 * CS
    LDS = UOFF + 95 * 80
    a.begin(K)
    a("s_cmp_ge_u32 s2, 640")
    a("s_cbranch_scc1 L_conv_end")
    a(f"s_load_dwordx4 s[24:27], s[0:1], {KA['ssm_k']}")
    a(f"s_load_dwordx2 s[4:5], s[0:1], {KA['ws']}")
    a("s_lshl_b32 s3, s2, 12")
    a("s_waitcnt lgkmcnt(0)")
    a("s_add_u32 s24, s24, s3")
    a("s_addc_u32 s25, s25, 0")
    a.srd(8, 24, 25, 4096)
    a("s_add_u32 s4, s4, s3")
    a("s_addc_u32 s5, s5, 0")
    a.srd(12, 4, 5, 4096, L.URT)
    a.srd(16, 4, 5, 4096, L.YT)
    a("s_and_b32 s6, s2, 0xfffffffe")
    a("s_lshl_b32 s6, s6, 1")
    a("s_load_dword s28, s[26:27], s6")
    a("v_lshlrev_b32 v1, 4, v0")
    a("buffer_load_dwordx4 v[48:51], v1, s[12:15], 0 offen")
    def hfill(qreg):
        a(f"v_lshlrev_b32 v2, 4, v{qreg}")
        a("v_subrev_u32 v3, 80, v2")
        a("v_subrev_u32 v4, 64, v2")
        a("buffer_load_dwordx4 v[16:19], v3, s[8:11], 0 offen")
        a("buffer_load_dwordx4 v[20:23], v4, s[8:11], 0 offen")
        a("s_waitcnt vmcnt(0)")
        for i in range(6):
            a(f"v_mov_b32 v{24+i}, v{17+i}")
        for i in range(7):
            a(f"v_alignbit_b32 v{30+i}, v{17+i}, v{16+i}, 16")
        for i in range(6):
            a(f"v_alignbit_b32 v{38+i}, v{18+i}, v{17+i}, 16")
        src = {0: 30, 2: 38, 4: 32, 6: 40, 1: 24, 3: 18, 5: 26, 7: 20}
        for j in range(8):
            a(f"ds_write_b128 v2, v[{src[j]}:{src[j]+3}] offset:{j*CS}")
    hfill(0)
    a("v_lshrrev_b32 v5, 2, v0")
    a("v_mul_u32_u24 v5, 80, v5")
    a("v_and_b32 v6, 3, v0")
    a("v_lshl_add_u32 v5, v6, 4, v5")
    a(f"ds_write_b128 v5, v[48:51] offset:{UOFF}")
    a("v_mov_b32 v52, 0"); a("v_mov_b32 v53, 0"); a("v_mov_b32 v54, 0"); a("v_mov_b32 v55, 0")
    a("v_cmp_gt_u32 vcc, 124, v0")
    a("s_and_saveexec_b64 s[30:31], vcc")
    a(f"ds_write_b128 v5, v[52:55] offset:{UOFF + 64*80}")
    a("s_mov_b64 exec, s[30:31]")
    a("v_cmp_gt_u32 vcc, 4, v0")
    a("s_and_saveexec_b64 s[30:31], vcc")
    a("s_cbranch_execz L_conv_skipx")
    a("v_add_u32 v7, 256, v0")
    hfill(7)
    a.label("L_conv_skipx")
    a("s_mov_b64 exec, s[30:31]")
    a("v_and_b32 v1, 31, v0")
    a("v_bfe_u32 v2, v0, 5, 1")
    a("v_lshrrev_b32 v3, 6, v0")
    a("v_and_b32 v4, 7, v1")
    a(f"v_mul_u32_u24 v4, {CS}, v4")
    a("v_lshrrev_b32 v5, 3, v1")
    a("v_add_u32 v5, v5, v2")
    a("v_lshl_add_u32 v4, v5, 4, v4")
    a("v_lshl_add_u32 v4, v3, 9, v4")
    a("v_add_u32 v4, 16, v4")
    a("v_sub_u32 v5, 31, v1")
    a("v_mul_u32_u24 v5, 80, v5")
    a("v_lshl_add_u32 v5, v2, 4, v5")
    a("v_mul_u32_u24 v6, 640, v3")
    a("v_add_u32 v5, v5, v6")
    a(f"v_add_u32 v5, {UOFF}, v5")
    for i in range(32):
        a(f"v_mov_b32 v{64+i}, 0")
    a("s_waitcnt lgkmcnt(0)")
    a("s_barrier")
    steps = [(dl, c0) for dl in range(8) for c0 in (0, 16)]
    def reads(k, base):
        dl, c0 = steps[k]
        oa = 64 * dl + (32 if c0 == 0 else 0)
        ob = 80 * dl + (32 if c0 == 0 else 0)
        a(f"ds_read_b128 v[{base}:{base+3}], v4 offset:{oa}")
        a(f"ds_read_b128 v[{base+4}:{base+7}], v5 offset:{ob+2560}")
        a(f"ds_read_b128 v[{base+8}:{base+11}], v5 offset:{ob}")
        a(f"ds_read_b128 v[{base+12}:{base+15}], v4 offset:{oa+2048}")
    reads(0, 16)
    for k in range(16):
        base = 16 + 16 * (k & 1)
        if k + 1 < 16:
            reads(k + 1, 16 + 16 * ((k + 1) & 1))
            a("s_waitcnt lgkmcnt(4)")
        else:
            a("s_waitcnt lgkmcnt(0)")
        a(f"v_mfma_f32_32x32x16_bf16 v[64:79], v[{base}:{base+3}], v[{base+4}:{base+7}], v[64:79]")
        a(f"v_mfma_f32_32x32x16_bf16 v[80:95], v[{base}:{base+3}], v[{base+8}:{base+11}], v[80:95]")
        a(f"v_mfma_f32_32x32x16_bf16 v[80:95], v[{base+12}:{base+15}], v[{base+4}:{base+7}], v[80:95]")
    a("s_nop 15")
    a("s_barrier")
    a("v_and_b32 v6, 63, v0")
    a("v_lshlrev_b32 v6, 4, v6")
    a("v_lshl_add_u32 v7, v3, 13, v6")
    for q in range(8):
        a(f"ds_write_b128 v7, v[{64+4*q}:{67+4*q}] offset:{q*1024}")
    a("v_lshl_add_u32 v8, v3, 11, v6")
    a("s_waitcnt lgkmcnt(0)")
    a("s_barrier")
    for ww in range(4):
        for qq in range(2):
            r = 16 + (ww * 2 + qq) * 4
            a(f"ds_read_b128 v[{r}:{r+3}], v8 offset:{ww*8192 + qq*1024}")
    a("v_lshrrev_b32 v9, 1, v3")
    a("v_lshlrev_b32 v9, 10, v9")
    a("v_lshl_add_u32 v9, v1, 5, v9")
    a("v_and_b32 v10, 1, v3")
    a("v_lshl_add_u32 v9, v10, 4, v9")
    a("v_lshl_add_u32 v9, v2, 2, v9")
    for qq in range(2):
        a(f"v_sub_u32 v10, {2044 - 8*qq}, v9")
        a("v_lshrrev_b32 v11, 5, v10")
        a("v_mul_u32_u24 v11, 80, v11")
        a("v_and_b32 v10, 31, v10")
        a("v_lshl_add_u32 v11, v10, 1, v11")
        a(f"ds_read_b64 v[{48+2*qq}:{49+2*qq}], v11 offset:{UOFF}")
    a("s_and_b32 s6, s2, 1")
    a("s_cmp_eq_u32 s6, 1")
    a("s_cbranch_scc1 L_conv_odd")
    a("s_lshl_b32 s28, s28, 16")
    a.label("L_conv_odd")
    a("s_and_b32 s28, s28, 0xffff0000")
    a("s_waitcnt lgkmcnt(0)")
    for qq in range(2):
        for i in range(4):
            r = 16 + qq * 4 + i
            for ww in range(1, 4):
                a(f"v_add_f32 v{r}, v{r}, v{16 + (ww*2+qq)*4 + i}")
    for qq in range(2):
        r = 16 + qq * 4
        rnd2(r, r + 1, 60); rnd2(r + 2, r + 3, 60)
        unpack(55, 54, 48 + 2 * qq)
        unpack(53, 52, 49 + 2 * qq)
        for i in range(4):
            a(f"v_mul_f32 v{52+i}, s28, v{52+i}")
        rnd2(52, 53, 60); rnd2(54, 55, 60)
        for i in range(4):
            a(f"v_add_f32 v{r+i}, v{r+i}, v{52+i}")
        a(f"v_cvt_pk_bf16_f32 v{56+2*qq}, v{r}, v{r+1}")
        a(f"v_cvt_pk_bf16_f32 v{57+2*qq}, v{r+2}, v{r+3}")
    a("v_lshlrev_b32 v9, 1, v9")
    a("buffer_store_dwordx2 v[56:57], v9, s[16:19], 0 offen")
    a("buffer_store_dwordx2 v[58:59], v9, s[16:19], 0 offen offset:16")
    a.label("L_conv_end")
    a.end(K, 96)
    a.launch(K, 640, 256, LDS)

def wave_sum(v, sdst):
    a("s_nop 1")
    for sh in (1, 2, 4, 8):
        a(f"v_add_f32_dpp v{v}, v{v}, v{v} row_shr:{sh} row_mask:0xf bank_mask:0xf bound_ctrl:0")
        a("s_nop 1")
    a(f"v_add_f32_dpp v{v}, v{v}, v{v} row_bcast:15 row_mask:0xa bank_mask:0xf")
    a("s_nop 1")
    a(f"v_add_f32_dpp v{v}, v{v}, v{v} row_bcast:31 row_mask:0xc bank_mask:0xf")
    a("s_nop 1")
    a(f"v_readlane_b32 s{sdst}, v{v}, 63")
    a("s_nop 1")

def ln_stats(xs, nvalid_first, maskreg, N, t0, smb, srinv):
    a(f"v_add_f32 v{t0}, v{xs[0]}, v{xs[1]}")
    for x in xs[2:]:
        a(f"v_add_f32 v{t0}, v{t0}, v{x}")
    wave_sum(t0, 40)
    a(f"v_mov_b32 v{t0}, s40")
    a(f"v_mul_f32 v{t0}, {1.0/N!r}, v{t0}")
    a(f"v_sub_f32 v{t0+1}, v{xs[0]}, v{t0}")
    a(f"v_mul_f32 v{t0+2}, v{t0+1}, v{t0+1}")
    for x in xs[1:8]:
        a(f"v_sub_f32 v{t0+1}, v{x}, v{t0}")
        a(f"v_fmac_f32 v{t0+2}, v{t0+1}, v{t0+1}")
    a(f"v_sub_f32 v{t0+1}, v{xs[8]}, v{t0}")
    a(f"v_mul_f32 v{t0+3}, v{t0+1}, v{t0+1}")
    for x in xs[9:]:
        a(f"v_sub_f32 v{t0+1}, v{x}, v{t0}")
        a(f"v_fmac_f32 v{t0+3}, v{t0+1}, v{t0+1}")
    a(f"v_fmac_f32 v{t0+2}, v{t0+3}, v{maskreg}")
    wave_sum(t0 + 2, 41)
    a(f"v_mov_b32 v{t0+1}, s41")
    a(f"v_mul_f32 v{t0+1}, {1.0/N!r}, v{t0+1}")
    rnd2(t0, t0 + 1, t0 + 2)
    a(f"v_add_f32 v{t0+1}, 0x3727c5ac, v{t0+1}")
    rnd2(t0 + 1, t0 + 1, t0 + 2)
    a(f"v_sqrt_f32 v{t0+1}, v{t0+1}")
    a("s_nop 0")
    rnd2(t0 + 1, t0 + 1, t0 + 2)
    a(f"v_rcp_f32 v{t0+1}, v{t0+1}")
    a("s_nop 1")
    a(f"v_readfirstlane_b32 s{smb}, v{t0}")
    a(f"v_readfirstlane_b32 s{srinv}, v{t0+1}")
    a("s_nop 1")

def ln_apply(xs, dst, smb, srinv, tmp):
    for i in range(0, 16, 2):
        a(f"v_subrev_f32 v{dst[i]}, s{smb}, v{xs[i]}")
        a(f"v_subrev_f32 v{dst[i+1]}, s{smb}, v{xs[i+1]}")
        rnd2(dst[i], dst[i + 1], tmp)
        a(f"v_mul_f32 v{dst[i]}, s{srinv}, v{dst[i]}")
        a(f"v_mul_f32 v{dst[i+1]}, s{srinv}, v{dst[i+1]}")
        rnd2(dst[i], dst[i + 1], tmp)

def gen_lnx(K, first):
    a.begin(K)
    E = f"L_{K}_end"
    a("s_cmp_ge_u32 s2, 256")
    a(f"s_cbranch_scc1 {E}")
    a(f"s_load_dwordx2 s[4:5], s[0:1], {KA['ws']}")
    a(f"s_load_dwordx2 s[6:7], s[0:1], {KA['A_q']}")
    a("v_and_b32 v1, 63, v0")
    a("v_lshrrev_b32 v2, 6, v0")
    a("s_lshl_b32 s3, s2, 3")
    a("s_waitcnt lgkmcnt(0)")
    if first:
        a.srd(8, 6, 7, 2048 * 640 * 2)
    else:
        a.srd(8, 4, 5, 2048 * 640 * 2, L.X2)
    a.srd(12, 4, 5, 640 * 2048 * 2, L.YT)
    a.srd(16, 4, 5, 2048 * 640 * 2, L.X1)
    a.srd(20, 4, 5, 2048 * 640 * 2, L.XNB)
    a("s_lshl_b32 s24, s2, 4")
    a("v_lshlrev_b32 v3, 12, v0")
    a("buffer_load_dwordx4 v[40:43], v3, s[12:15], s24 offen")
    a("v_add_u32 v4, 0x200000, v3")
    a("buffer_load_dwordx4 v[44:47], v4, s[12:15], s24 offen")
    a("v_add_u32 v5, s3, v2")
    a("v_mul_u32_u24 v6, 1280, v5")
    a("v_lshl_add_u32 v6, v1, 4, v6")
    a("buffer_load_dwordx4 v[48:51], v6, s[8:11], 0 offen")
    a("v_mov_b32 v52, 0"); a("v_mov_b32 v53, 0"); a("v_mov_b32 v54, 0"); a("v_mov_b32 v55, 0")
    a("v_mov_b32 v9, 0")
    a("v_cmp_gt_u32 vcc, 16, v1")
    a("s_and_saveexec_b64 s[30:31], vcc")
    a("buffer_load_dwordx4 v[52:55], v6, s[8:11], 0 offen offset:1024")
    a("v_mov_b32 v9, 1.0")
    a("s_mov_b64 exec, s[30:31]")
    a("v_lshrrev_b32 v7, 3, v0")
    a("v_lshlrev_b32 v7, 2, v7")
    a("v_lshl_add_u32 v7, v0, 4, v7")
    a("s_waitcnt vmcnt(2)")
    a("ds_write2_b32 v7, v40, v41 offset0:0 offset1:1")
    a("ds_write2_b32 v7, v42, v43 offset0:2 offset1:3")
    a("v_cmp_gt_u32 vcc, 128, v0")
    a("s_and_saveexec_b64 s[30:31], vcc")
    a(f"v_add_u32 v8, {512*16 + 64*4}, v7")
    a("ds_write2_b32 v8, v44, v45 offset0:0 offset1:1")
    a("ds_write2_b32 v8, v46, v47 offset0:2 offset1:3")
    a("s_mov_b64 exec, s[30:31]")
    a("s_waitcnt vmcnt(0) lgkmcnt(0)")
    a("s_barrier")
    a("v_mul_u32_u24 v7, 132, v1")
    a("v_lshl_add_u32 v7, v2, 1, v7")
    Y = list(range(80, 96))
    for i in range(8):
        a(f"ds_read_u16 v{Y[i]}, v7 offset:{i*16}")
    for i in range(8):
        a(f"v_mov_b32 v{Y[8+i]}, 0")
    a("v_cmp_gt_u32 vcc, 16, v1")
    a("s_and_saveexec_b64 s[30:31], vcc")
    for i in range(8):
        a(f"ds_read_u16 v{Y[8+i]}, v7 offset:{512*16 + 64*4 + i*16}")
    a("s_mov_b64 exec, s[30:31]")
    X = list(range(60, 76))
    for i in range(8):
        unpack(X[2 * i], X[2 * i + 1], 48 + i)
    ln_stats(X, 8, 9, 640, 10, 42, 43)
    Q = list(range(100, 116))
    ln_apply(X, Q, 42, 43, 10)
    a("s_waitcnt lgkmcnt(0)")
    for i in range(16):
        a(f"v_lshlrev_b32 v{Y[i]}, 16, v{Y[i]}")
    for i in range(0, 16, 2):
        a(f"v_mul_f32 v{Q[i]}, v{Q[i]}, v{Y[i]}")
        a(f"v_mul_f32 v{Q[i+1]}, v{Q[i+1]}, v{Y[i+1]}")
        rnd2(Q[i], Q[i + 1], 10)
        a(f"v_add_f32 v{X[i]}, v{X[i]}, v{Q[i]}")
        a(f"v_add_f32 v{X[i+1]}, v{X[i+1]}, v{Q[i+1]}")
        a(f"v_cvt_pk_bf16_f32 v{120+i//2}, v{X[i]}, v{X[i+1]}")
        unpack(X[i], X[i + 1], 120 + i // 2)
    a("buffer_store_dwordx4 v[120:123], v6, s[16:19], 0 offen")
    a("v_cmp_gt_u32 vcc, 16, v1")
    a("s_and_saveexec_b64 s[30:31], vcc")
    a("buffer_store_dwordx4 v[124:127], v6, s[16:19], 0 offen offset:1024")
    a("s_mov_b64 exec, s[30:31]")
    ln_stats(X, 8, 9, 640, 10, 42, 43)
    ln_apply(X, Q, 42, 43, 10)
    for i in range(0, 16, 2):
        a(f"v_cvt_pk_bf16_f32 v{128+i//2}, v{Q[i]}, v{Q[i+1]}")
    a("v_lshlrev_b32 v7, 15, v1")
    a("v_lshl_add_u32 v7, v5, 4, v7")
    a("buffer_store_dwordx4 v[128:131], v7, s[20:23], 0 offen")
    a("v_add_u32 v7, 0x200000, v7")
    a("v_cmp_gt_u32 vcc, 16, v1")
    a("s_and_saveexec_b64 s[30:31], vcc")
    a("buffer_store_dwordx4 v[132:135], v7, s[20:23], 0 offen")
    a("s_mov_b64 exec, s[30:31]")
    a.label(E)
    a.end(K, 136)
    a.launch(K, 256, 512, 640 * 16 + 80 * 4)

def gen_lnz(K):
    a.begin(K)
    E = f"L_{K}_end"
    a("s_cmp_ge_u32 s2, 256")
    a(f"s_cbranch_scc1 {E}")
    a(f"s_load_dwordx2 s[4:5], s[0:1], {KA['ws']}")
    a("v_and_b32 v1, 63, v0")
    a("v_lshrrev_b32 v2, 6, v0")
    a("s_lshl_b32 s3, s2, 3")
    a("s_waitcnt lgkmcnt(0)")
    a.srd(8, 4, 5, 2048 * 768 * 2, L.Z2)
    a.srd(12, 4, 5, 2048 * 768 * 2, L.Z2NB)
    a("v_add_u32 v5, s3, v2")
    a("v_mul_u32_u24 v6, 1536, v5")
    a("v_lshl_add_u32 v6, v1, 4, v6")
    a("buffer_load_dwordx4 v[48:51], v6, s[8:11], 0 offen")
    a("v_mov_b32 v52, 0"); a("v_mov_b32 v53, 0"); a("v_mov_b32 v54, 0"); a("v_mov_b32 v55, 0")
    a("v_mov_b32 v9, 0")
    a("v_cmp_gt_u32 vcc, 32, v1")
    a("s_and_saveexec_b64 s[30:31], vcc")
    a("buffer_load_dwordx4 v[52:55], v6, s[8:11], 0 offen offset:1024")
    a("v_mov_b32 v9, 1.0")
    a("s_mov_b64 exec, s[30:31]")
    a("s_waitcnt vmcnt(0)")
    X = list(range(60, 76))
    for i in range(8):
        unpack(X[2 * i], X[2 * i + 1], 48 + i)
    ln_stats(X, 8, 9, 768, 10, 42, 43)
    Q = list(range(100, 116))
    ln_apply(X, Q, 42, 43, 10)
    a("v_mul_u32_u24 v7, 132, v1")
    a("v_lshl_add_u32 v7, v2, 1, v7")
    for i in range(8):
        a(f"ds_write_b16_d16_hi v7, v{Q[i]} offset:{i*16}")
    a("v_cmp_gt_u32 vcc, 32, v1")
    a("s_and_saveexec_b64 s[30:31], vcc")
    for i in range(8):
        a(f"ds_write_b16_d16_hi v7, v{Q[8+i]} offset:{64*132 + i*16}")
    a("s_mov_b64 exec, s[30:31]")
    a("s_waitcnt lgkmcnt(0)")
    a("s_barrier")
    a("v_lshrrev_b32 v7, 3, v0")
    a("v_lshlrev_b32 v7, 2, v7")
    a("v_lshl_add_u32 v7, v0, 4, v7")
    a("ds_read2_b32 v[20:21], v7 offset0:0 offset1:1")
    a("ds_read2_b32 v[22:23], v7 offset0:2 offset1:3")
    a("s_mul_i32 s24, s2, 12288")
    a("v_lshlrev_b32 v8, 4, v0")
    a("v_cmp_gt_u32 vcc, 256, v0")
    a("s_and_saveexec_b64 s[30:31], vcc")
    a(f"v_add_u32 v7, {64*132}, v7")
    a("ds_read2_b32 v[24:25], v7 offset0:0 offset1:1")
    a("ds_read2_b32 v[26:27], v7 offset0:2 offset1:3")
    a("s_waitcnt lgkmcnt(0)")
    a("v_add_u32 v10, 8192, v8")
    a("buffer_store_dwordx4 v[24:27], v10, s[12:15], s24 offen")
    a("s_mov_b64 exec, s[30:31]")
    a("s_waitcnt lgkmcnt(0)")
    a("buffer_store_dwordx4 v[20:23], v8, s[12:15], s24 offen")
    a.label(E)
    a.end(K, 120)
    a.launch(K, 256, 512, 96 * 132)

def main():
    import gemm
    gen_prep()
    gen_conv()
    gen_lnx("lnx0_kernel", True)
    l1 = gemm.gen_gemm1(a, "gemm1_kernel"); a.launch("gemm1_kernel", 256, 256, l1)
    gen_lnz("lnz_kernel")
    l2 = gemm.gen_gemm2(a, "gemm2_kernel"); a.launch("gemm2_kernel", 256, 256, l2)
    l3 = gemm.gen_gemm3(a, "gemm3a_kernel", False); a.launch("gemm3a_kernel", 256, 256, l3)
    gen_lnx("lnx1_kernel", False)
    a.launch("gemm1_kernel", 256, 256, l1)
    a.launch("lnz_kernel", 256, 512, 96 * 132)
    a.launch("gemm2_kernel", 256, 256, l2)
    l3 = gemm.gen_gemm3(a, "gemm3b_kernel", True); a.launch("gemm3b_kernel", 256, 256, l3)
    open(sys.argv[1] if len(sys.argv) > 1 else f"cdna_kernels/{NAME}.s", "w").write(a.text())

if __name__ == "__main__":
    import gen
    gen.main()
```

```python
import layout as L
import os, struct
from gen import KA
DIAG = os.environ.get("DIAG", "")
def stamp(a, K, i):
    if DIAG and DIAG in K:
        a(f"s_memtime s[{60+2*i}:{61+2*i}]")
def stamp_out(a, K, n):
    if DIAG and DIAG in K:
        a("s_waitcnt vmcnt(0) lgkmcnt(0)")
        a.srd(40, 4, 5, 1 << 20, 64 << 20)
        a("s_lshl_b32 s3, s2, 6")
        a("v_mov_b32 v5, s3")
        a("v_cmp_eq_u32 vcc, 0, v0")
        a("s_and_saveexec_b64 s[50:51], vcc")
        for i in range(n):
            a(f"v_mov_b32 v6, s{60+2*i}")
            a(f"v_mov_b32 v7, s{61+2*i}")
            a(f"buffer_store_dwordx2 v[6:7], v5, s[40:43], 0 offen offset:{8*i}")
            a("s_nop 1")
        a("s_mov_b64 exec, s[50:51]")

def magic_div(d, maxp):
    for s in range(10, 25):
        m = -(-(1 << s) // d)
        if m < (1 << 24) and all((p * m) >> s == p // d for p in range(maxp)) and maxp * m < (1 << 32):
            return m, s
    raise Exception("no magic")

def gen_gemm(a, K, BM, BN, KDIM, NST, WM, WN, MT, NT, Asrc, Bsrc, epi, pf=None, BARLAG=int(os.environ.get('BARLAG','0')), RPM=int(os.environ.get('RPM','1'))):
    assert WM * WN == 4
    TM = BM // WM // 16
    TN = BN // WN // 16
    LA = BM // 32
    LB = -(-BN // 32)
    LW = LA + LB
    AIMG = BM * 128
    BIMG = LB * 4 * 1024
    STAGE = AIMG + BIMG
    NK = KDIM // 64
    E = f"L_{K}_end"
    a.begin(K)
    a(f"s_cmp_ge_u32 s2, {MT*NT}")
    a(f"s_cbranch_scc1 {E}")
    stamp(a, K, 0)
    if DIAG and DIAG in K: a("s_memrealtime s[72:73]")
    a(f"s_load_dwordx2 s[4:5], s[0:1], {KA['ws']}")
    a(f"s_load_dwordx4 s[28:31], s[0:1], {KA['w_sp']}")
    a(f"s_load_dwordx2 s[32:33], s[0:1], {KA['out']}")
    MTX = MT // 8
    assert MTX * NT == 32 and (NT & (NT - 1)) == 0
    lg = NT.bit_length() - 1
    a("s_and_b32 s6, s2, 7")
    a("s_lshr_b32 s7, s2, 3")
    a(f"s_mul_i32 s22, s6, {MTX}")
    a(f"s_lshr_b32 s3, s7, {lg}")
    a("s_add_u32 s22, s22, s3")
    a(f"s_and_b32 s23, s7, {NT-1}")
    a("v_and_b32 v1, 63, v0")
    a("v_and_b32 v2, 15, v0")
    a("v_bfe_u32 v3, v0, 4, 2")
    a("v_lshrrev_b32 v4, 6, v0")
    a("s_nop 0")
    a("v_readfirstlane_b32 s21, v4")
    a(f"s_mul_i32 s34, s22, {BM}")
    a(f"s_mul_i32 s35, s23, {BN}")
    a("s_cmp_lt_u32 s21, 4")
    a(f"s_cbranch_scc1 L_{K}_comp")
    a("s_sub_u32 s21, s21, 4")
    a("s_waitcnt lgkmcnt(0)")
    vDA = list(range(10, 10 + LA))
    vDB = list(range(14, 14 + LB))
    NBI = BN // 8
    if Asrc[0] == 'C':
        _, off, RT = Asrc
        a.srd(8, 4, 5, RT * KDIM * 2, off)
        stepA = 8 * RT * 16
        for q in range(LA):
            a(f"s_mul_i32 s3, s21, {LA*64}")
            a(f"s_add_u32 s3, s3, {q*64}")
            a("v_add_u32 v5, s3, v1")
            lb = BM.bit_length() - 1
            assert BM == 1 << lb
            a(f"v_lshrrev_b32 v6, {lb}, v5")
            a(f"v_and_b32 v5, {BM-1}, v5")
            a(f"v_mul_u32_u24 v6, {RT}, v6")
            a("v_add3_u32 v5, v5, v6, s34")
            a(f"v_lshlrev_b32 v{vDA[q]}, 4, v5")
        swz = False
    else:
        _, rowbytes = Asrc
        a.srd(8, 28, 29, 2048 * 2048 * 2)
        stepA = 128
        for q in range(LA):
            a(f"s_mul_i32 s3, s21, {LA*64}")
            a(f"s_add_u32 s3, s3, {q*64}")
            a("v_add_u32 v5, s3, v1")
            a("v_lshrrev_b32 v6, 3, v5")
            a("v_and_b32 v5, 7, v5")
            a("v_bfe_u32 v7, v6, 1, 3")
            a("v_xor_b32 v5, v5, v7")
            a("v_add_u32 v6, s34, v6")
            a(f"v_mul_u32_u24 v6, {rowbytes}, v6")
            a(f"v_lshl_add_u32 v{vDA[q]}, v5, 4, v6")
        swz = True
    _, offB, RTB = Bsrc
    a.srd(12, 4, 5, RTB * KDIM * 2, offB)
    stepB = 8 * RTB * 16
    mg, sh = magic_div(BN, LB * 256)
    for q in range(LB):
        a(f"s_lshl_b32 s3, s21, 6")
        a(f"s_add_u32 s3, s3, {q*256}")
        a("v_add_u32 v5, s3, v1")
        a(f"v_mul_u32_u24 v6, {mg}, v5")
        a(f"v_lshrrev_b32 v6, {sh}, v6")
        a(f"v_mul_u32_u24 v7, {BN}, v6")
        a("v_sub_u32 v7, v5, v7")
        a(f"v_mul_u32_u24 v6, {RTB}, v6")
        a("v_add3_u32 v7, v7, v6, s35")
        a(f"v_lshlrev_b32 v{vDB[q]}, 4, v7")
    a(f"s_mul_i32 s24, s21, {LA*1024}")
    a(f"s_lshl_b32 s25, s21, 10")
    a(f"s_add_u32 s25, s25, {AIMG}")
    a("s_mov_b32 s16, 0")
    a("s_mov_b32 s17, 0")
    a("s_mov_b32 s18, 0")
    def loader(tag, LBw):
        LWw = LA + LBw
        def dma_stage():
            a("s_add_u32 s26, s18, s24")
            a("s_add_u32 s27, s18, s25")
            for q in range(LA):
                a(f"s_add_u32 m0, s26, {q*1024}")
                a("s_nop 0")
                if not os.environ.get("NOLOAD"): a(f"buffer_load_dwordx4 v{vDA[q]}, s[8:11], s16 offen lds")
            for q in range(LBw):
                a(f"s_add_u32 m0, s27, {q*4096}")
                a("s_nop 0")
                if not os.environ.get("NOLOAD"): a(f"buffer_load_dwordx4 v{vDB[q]}, s[12:15], s17 offen lds")
            a(f"s_add_u32 s16, s16, {0 if os.environ.get('HOTA') else stepA}")
            a(f"s_add_u32 s17, s17, {0 if os.environ.get('HOTB') else stepB}")
            a(f"s_add_u32 s18, s18, {STAGE}")
            a(f"s_cmp_eq_u32 s18, {NST*STAGE}")
            a("s_cselect_b32 s18, 0, s18")
        issued = 0
        def issue_upto(n):
            nonlocal issued
            while issued < min(n, NK):
                dma_stage(); issued += 1
        b = 0
        issue_upto(min(int(os.environ.get('INIT','3')), NST))
        looped = False
        while b <= NK:
            nloop = NK - issued
            steady = (issued == b + NST) or (os.environ.get('RAMP','2') == '1')
            if not looped and b >= 1 and steady and nloop >= 2:
                a(f"s_mov_b32 s20, {nloop}")
                a.label(f"L_{K}_lloop{tag}")
                a(f"s_waitcnt vmcnt({(issued - b - 2)*LWw})")
                a("s_barrier")
                dma_stage()
                a("s_sub_u32 s20, s20, 1")
                a("s_cmp_lg_u32 s20, 0")
                a(f"s_cbranch_scc1 L_{K}_lloop{tag}")
                b += nloop; issued += nloop
                looped = True
                continue
            need = min(b + 1, NK - 1)
            a(f"s_waitcnt vmcnt({(issued - need - 1) * LWw})")
            a("s_barrier")
            lim = (b + NST + 1) if b >= 1 else NST
            issue_upto(min(issued + int(os.environ.get('RAMP','2')), lim))
            b += 1
        if pf is not None and os.environ.get("PF"):
            kind, nbytes_wg = pf
            a("s_lshr_b32 s3, s2, 3")
            if kind == 'wsp':
                a.srd(52, 28, 29, 2048 * 2048 * 2)
                a("s_and_b32 s6, s2, 7")
                a("s_lshl_b32 s6, s6, 5")
                a("s_add_u32 s3, s3, s6")
            else:
                a.srd(52, 4, 5, 768 * 640 * 2, L.WOUTB)
            a(f"s_mul_i32 s3, s3, {nbytes_wg}")
            a("v_lshlrev_b32 v5, 4, v1")
            a(f"v_lshl_add_u32 v5, s21, 10, v5")
            a("v_add_u32 v5, s3, v5")
            for q in range(-(-nbytes_wg // 4096)):
                a(f"buffer_load_dwordx4 v[{20+4*q}:{23+4*q}], v5, s[52:55], 0 offen")
                a("v_add_u32 v5, 4096, v5")
        a(f"s_branch {E if not epi.split else 'L_' + K + '_ldepi'}")
    if NBI % 4 == 0:
        loader("", LB)
    else:
        a(f"s_cmp_lt_u32 s21, {NBI % 4}")
        a(f"s_cbranch_scc0 L_{K}_ld2")
        loader("a", LB)
        a.label(f"L_{K}_ld2")
        loader("b", LB - 1)
    a.label(f"L_{K}_comp")
    vRA0, vRA1, vRB, vA0c, vA1c, vBc = 18, 19, 20, 21, 22, 23
    F0 = 24
    NF = (TM + TN) * 4
    ACC = F0 + 4 * NF
    NACC = TM * TN * 4
    EP = ACC + NACC
    wm_rows = BM // WM
    wn_cols = BN // WN
    if WN == 2:
        a("s_lshr_b32 s36, s21, 1")
        a("s_and_b32 s37, s21, 1")
    else:
        a("s_mov_b32 s36, s21")
        a("s_mov_b32 s37, 0")
    a(f"s_mul_i32 s36, s36, {wm_rows}")
    a(f"s_mul_i32 s37, s37, {wn_cols}")
    if not swz:
        a(f"v_mul_u32_u24 v5, {BM}, v3")
        a("v_add3_u32 v5, v5, v2, s36")
        a(f"v_lshlrev_b32 v{vRA0}, 4, v5")
        def a_off(kk, tm): return kk * 4 * BM * 16 + tm * 256
        def a_reg(kk): return vA0c
    else:
        a("v_lshrrev_b32 v5, 1, v2")
        a("v_xor_b32 v5, v5, v3")
        a("v_add_u32 v6, s36, v2")
        a("v_lshlrev_b32 v6, 7, v6")
        a(f"v_lshl_add_u32 v{vRA0}, v5, 4, v6")
        a(f"v_xor_b32 v{vRA1}, 64, v{vRA0}")
        def a_off(kk, tm): return tm * 2048
        def a_reg(kk): return vA0c if kk == 0 else vA1c
    a(f"v_mul_u32_u24 v5, {BN}, v3")
    a("v_add3_u32 v5, v5, v2, s37")
    a(f"v_lshlrev_b32 v5, 4, v5")
    a(f"v_add_u32 v{vRB}, {AIMG}, v5")
    def b_off(kk, tn): return kk * 4 * BN * 16 + tn * 256
    for i in range(NACC):
        a(f"v_mov_b32 v{ACC+i}, 0")
    a("s_waitcnt lgkmcnt(0)")
    epi.pre(a, dict(TM=TM, TN=TN, EP=EP, BM=BM, BN=BN))
    def set_addr():
        a(f"v_add_u32 v{vA0c}, s19, v{vRA0}")
        if swz:
            a(f"v_add_u32 v{vA1c}, s19, v{vRA1}")
        a(f"v_add_u32 v{vBc}, s19, v{vRB}")
    def read_list(kk, F):
        out = []
        if os.environ.get("NOCOMP") or os.environ.get("NOREAD"): return out
        for tm in range(TM):
            r = F + tm * 4
            out.append(f"ds_read_b128 v[{r}:{r+3}], v{a_reg(kk)} offset:{a_off(kk, tm)}")
        for tn in range(TN):
            r = F + TM * 4 + tn * 4
            out.append(f"ds_read_b128 v[{r}:{r+3}], v{vBc} offset:{b_off(kk, tn)}")
        return out
    def mfma_list(F):
        out = []
        for tm in range(TM):
            for tn in range(TN):
                c = ACC + (tm * TN + tn) * 4
                ra = F + tm * 4
                rb = F + TM * 4 + tn * 4
                out.append("s_nop 0" if os.environ.get("NOCOMP") else f"v_mfma_f32_16x16x32_bf16 v[{c}:{c+3}], v[{rb}:{rb+3}], v[{ra}:{ra+3}], v[{c}:{c+3}]")
        return out
    def adv():
        a(f"s_add_u32 s19, s19, {STAGE}")
        a(f"s_cmp_eq_u32 s19, {NST*STAGE}")
        a("s_cselect_b32 s19, 0, s19")
        set_addr()
    a("s_mov_b32 s19, 0")
    a(f"s_mov_b32 s20, {NK//2}")
    set_addr()
    a("s_mov_b32 s82, 0")
    stamp(a, K, 1)
    a("s_barrier")
    stamp(a, K, 2)
    for r in read_list(0, F0) + read_list(1, F0 + NF):
        a(r)
    adv()
    a("s_waitcnt lgkmcnt(0)")
    LP = f"L_{K}_loop"
    a.label(LP)
    for par in range(2):
        cur = F0 + par * 2 * NF
        nxt = F0 + (1 - par) * 2 * NF
        rl = read_list(0, nxt) + read_list(1, nxt + NF)
        ml = mfma_list(cur) + mfma_list(cur + NF)
        nbefore = len(ml) - BARLAG
        ri = 0
        for mi, m in enumerate(ml):
            if mi == nbefore:
                while ri < len(rl):
                    a(rl[ri]); ri += 1
                a("s_waitcnt lgkmcnt(0)")
                a("s_barrier")
                if os.environ.get("ITSTAMP") and DIAG in K:
                    a("s_memtime s[80:81]")
                    a("s_waitcnt lgkmcnt(0)")
                    a("s_mov_b32 m0, s82"); a("s_nop 0"); a("v_writelane_b32 v250, s80, m0")
                    a("s_add_u32 s82, s82, 1")
            a(m)
            for _ in range(RPM):
                if ri < len(rl) and mi < nbefore:
                    a(rl[ri]); ri += 1
        if nbefore == len(ml):
            while ri < len(rl):
                a(rl[ri]); ri += 1
            adv()
            a("s_waitcnt lgkmcnt(0)")
            a("s_barrier")
        else:
            adv()
    a("s_sub_u32 s20, s20, 1")
    a("s_cmp_lg_u32 s20, 0")
    a(f"s_cbranch_scc1 {LP}")
    stamp(a, K, 3)
    a("s_nop 7")
    a("s_nop 1")
    a("s_waitcnt vmcnt(0) lgkmcnt(0)")
    stamp(a, K, 4)
    if epi.split:
        H = TM // 2
        nq = H * TN
        a("v_lshlrev_b32 v5, 4, v1")
        a(f"s_mul_i32 s3, s21, {nq*1024}")
        a("v_add_u32 v5, s3, v5")
        for q in range(nq):
            c = ACC + (H * TN + q) * 4
            a(f"ds_write_b128 v5, v[{c}:{c+3}] offset:{q*1024}")
        a("s_waitcnt lgkmcnt(0)")
        a("s_barrier")
        a(f"s_branch L_{K}_epi")
        a.label(f"L_{K}_ldepi")
        if WN == 2:
            a("s_lshr_b32 s36, s21, 1")
            a("s_and_b32 s37, s21, 1")
        else:
            a("s_mov_b32 s36, s21")
            a("s_mov_b32 s37, 0")
        a(f"s_mul_i32 s36, s36, {wm_rows}")
        a(f"s_add_u32 s36, s36, {H*16}")
        a(f"s_mul_i32 s37, s37, {wn_cols}")
        a("v_lshlrev_b32 v5, 4, v1")
        a(f"s_mul_i32 s3, s21, {nq*1024}")
        a("v_add_u32 v5, s3, v5")
        a("s_barrier")
        for q in range(nq):
            c = ACC + q * 4
            a(f"ds_read_b128 v[{c}:{c+3}], v5 offset:{q*1024}")
        a("s_waitcnt lgkmcnt(0)")
        a.label(f"L_{K}_epi")
        epi.post(a, dict(TM=H, TN=TN, EP=EP, ACC=ACC, BM=BM, BN=BN))
    else:
        epi.post(a, dict(TM=TM, TN=TN, EP=EP, ACC=ACC, BM=BM, BN=BN))
    if DIAG and DIAG in K:
        a("s_waitcnt vmcnt(0)")
    stamp(a, K, 5)
    if DIAG and DIAG in K: a("s_memrealtime s[74:75]")
    stamp_out(a, K, 8)
    if os.environ.get("ITSTAMP") and DIAG in K:
        a.srd(40, 4, 5, 1 << 20, 66 << 20)
        a("s_lshl_b32 s3, s2, 8")
        a("v_lshl_add_u32 v5, v1, 2, s3")
        a("s_cmp_eq_u32 s21, 0")
        a(f"s_cbranch_scc0 {E}")
        a("buffer_store_dword v250, v5, s[40:43], 0 offen")
    a.label(E)
    a.end(K, 256 if os.environ.get("ITSTAMP") else EP + epi.nregs)
    return NST * STAGE

def unpack(a, lo, hi, src):
    a(f"v_lshlrev_b32 v{lo}, 16, v{src}")
    a(f"v_and_b32 v{hi}, 0xffff0000, v{src}")

def rnd2(a, x0, x1, tmp):
    a(f"v_cvt_pk_bf16_f32 v{tmp}, v{x0}, v{x1}")
    unpack(a, x0, x1, tmp)

class Epi1:
    nregs = 16
    split = True
    def pre(self, a, c):
        pass
    def post(self, a, c):
        TM, TN, EP, ACC = c['TM'], c['TN'], c['EP'], c['ACC']
        EP += EP & 1
        a("s_cmp_lt_u32 s23, 8")
        a(f"s_mov_b32 s3, {L.Z2}")
        a(f"s_cselect_b32 s3, {L.Z1}, s3")
        a("s_add_u32 s40, s4, s3")
        a("s_addc_u32 s41, s5, 0")
        a(f"s_mov_b32 s42, {2048*768*2}")
        a("s_mov_b32 s43, 0x00020000")
        a("s_and_b32 s3, s23, 7")
        a("s_mul_i32 s3, s3, 96")
        a("s_add_u32 s3, s3, s37")
        a("s_add_u32 s6, s34, s36")
        a("v_add_u32 v5, s6, v2")
        a("v_mul_u32_u24 v5, 1536, v5")
        a("v_lshl_add_u32 v6, v3, 2, s3")
        a("v_lshl_add_u32 v5, v6, 1, v5")
        c1 = struct.unpack("<I", struct.pack("<f", -2.302208198))[0]
        c2 = struct.unpack("<I", struct.pack("<f", -0.1029432397))[0]
        C1, C2, ONE = EP + 6, EP + 8, EP + 10
        for r, v in ((C1, c1), (C2, c2), (ONE, 0x3f800000)):
            a(f"v_mov_b32 v{r}, {v:#x}")
            a(f"v_mov_b32 v{r+1}, {v:#x}")
        T = EP
        def pr(x): return f"v[{x}:{x+1}]"
        for tm in range(TM):
            for tn in range(TN):
                cc = ACC + (tm * TN + tn) * 4
                rnd2(a, cc, cc + 1, T + 4)
                rnd2(a, cc + 2, cc + 3, T + 5)
                for h in (0, 2):
                    a(f"v_pk_mul_f32 {pr(T+h)}, {pr(cc+h)}, {pr(cc+h)}")
                for h in (0, 2):
                    a(f"v_pk_fma_f32 {pr(T+h)}, {pr(T+h)}, {pr(C2)}, {pr(C1)}")
                for h in (0, 2):
                    a(f"v_pk_mul_f32 {pr(T+h)}, {pr(T+h)}, {pr(cc+h)}")
                for i in range(4):
                    a(f"v_exp_f32 v{T+i}, v{T+i}")
                a("s_nop 0")
                for h in (0, 2):
                    a(f"v_pk_add_f32 {pr(T+h)}, {pr(T+h)}, {pr(ONE)}")
                for i in range(4):
                    a(f"v_rcp_f32 v{T+i}, v{T+i}")
                a("s_nop 0")
                for h in (0, 2):
                    a(f"v_pk_mul_f32 {pr(T+h)}, {pr(T+h)}, {pr(cc+h)}")
                a(f"v_cvt_pk_bf16_f32 v{cc}, v{T}, v{T+1}")
                a(f"v_cvt_pk_bf16_f32 v{cc+1}, v{T+2}, v{T+3}")
                if tm > 0 and tn == 0:
                    a(f"v_add_u32 v5, {16*1536}, v5")
                if not os.environ.get("NOSTORE"): a(f"buffer_store_dwordx2 v[{cc}:{cc+1}], v5, s[40:43], 0 offen offset:{tn*32}")

class Epi2:
    nregs = 32
    split = False
    def pre(self, a, c):
        TM, TN, EP = c['TM'], c['TN'], c['EP']
        a.srd(40, 4, 5, 2048 * 768 * 2, L.Z1)
        a.srd(44, 30, 31, 2048 * 2)
        a("s_add_u32 s3, s35, s37")
        a("s_add_u32 s6, s34, s36")
        a("v_add_u32 v8, s6, v2")
        a("v_mul_u32_u24 v5, 1536, v8")
        a("v_lshl_add_u32 v6, v3, 2, s3")
        a("v_lshl_add_u32 v5, v6, 1, v5")
        a("v_lshlrev_b32 v7, 1, v8")
        for tm in range(TM):
            if tm > 0:
                a(f"v_add_u32 v5, {16*1536}, v5")
            for tn in range(TN):
                r = EP + (tm * TN + tn) * 2
                a(f"buffer_load_dwordx2 v[{r}:{r+1}], v5, s[40:43], 0 offen offset:{tn*32}")
            a(f"buffer_load_ushort v{EP+TM*TN*2+tm}, v7, s[44:47], 0 offen offset:{tm*32}")
        a("v_lshrrev_b32 v6, 3, v6")
        a("v_lshlrev_b32 v6, 15, v6")
        a("v_lshl_add_u32 v6, v8, 4, v6")
        a("v_and_b32 v7, 1, v3")
        a("v_lshl_add_u32 v9, v7, 3, v6")
    def post(self, a, c):
        TM, TN, EP, ACC = c['TM'], c['TN'], c['EP'], c['ACC']
        a.srd(40, 4, 5, 2048 * 768 * 2, L.HB)
        T = EP + TM * TN * 2 + TM
        for tm in range(TM):
            b = EP + TM * TN * 2 + tm
            a(f"v_lshlrev_b32 v{b}, 16, v{b}")
            for tn in range(TN):
                cc = ACC + (tm * TN + tn) * 4
                z = EP + (tm * TN + tn) * 2
                rnd2(a, cc, cc + 1, T + 4)
                rnd2(a, cc + 2, cc + 3, T + 4)
                for i in range(4):
                    a(f"v_add_f32 v{cc+i}, v{cc+i}, v{b}")
                rnd2(a, cc, cc + 1, T + 4)
                rnd2(a, cc + 2, cc + 3, T + 4)
                unpack(a, T, T + 1, z)
                unpack(a, T + 2, T + 3, z + 1)
                for i in range(4):
                    a(f"v_mul_f32 v{cc+i}, v{cc+i}, v{T+i}")
                a(f"v_cvt_pk_bf16_f32 v{cc}, v{cc}, v{cc+1}")
                a(f"v_cvt_pk_bf16_f32 v{cc+1}, v{cc+2}, v{cc+3}")
                a(f"v_add_u32 v{T+5}, {tn*2*32768 + tm*256}, v9")
                a(f"buffer_store_dwordx2 v[{cc}:{cc+1}], v{T+5}, s[40:43], 0 offen")

class Epi3:
    nregs = 24
    split = False
    def __init__(self, final):
        self.final = final
    def pre(self, a, c):
        TM, TN, EP = c['TM'], c['TN'], c['EP']
        a.srd(40, 4, 5, 2048 * 640 * 2, L.X1)
        a("s_add_u32 s3, s35, s37")
        a("s_add_u32 s6, s34, s36")
        a("v_add_u32 v8, s6, v2")
        a("v_mul_u32_u24 v5, 1280, v8")
        a("v_lshl_add_u32 v6, v3, 2, s3")
        a("v_lshl_add_u32 v9, v6, 1, v5")
        for tm in range(TM):
            for tn in range(TN):
                r = EP + (tm * TN + tn) * 2
                assert tm == 0
                a(f"buffer_load_dwordx2 v[{r}:{r+1}], v9, s[40:43], 0 offen offset:{tn*32}")
    def post(self, a, c):
        TM, TN, EP, ACC = c['TM'], c['TN'], c['EP'], c['ACC']
        if self.final:
            a.srd(40, 32, 33, 2048 * 640 * 2)
        else:
            a.srd(40, 4, 5, 2048 * 640 * 2, L.X2)
        T = EP + TM * TN * 2
        for tm in range(TM):
            for tn in range(TN):
                cc = ACC + (tm * TN + tn) * 4
                z = EP + (tm * TN + tn) * 2
                rnd2(a, cc, cc + 1, T + 4)
                rnd2(a, cc + 2, cc + 3, T + 4)
                unpack(a, T, T + 1, z)
                unpack(a, T + 2, T + 3, z + 1)
                for i in range(4):
                    a(f"v_add_f32 v{cc+i}, v{cc+i}, v{T+i}")
                a(f"v_cvt_pk_bf16_f32 v{cc}, v{cc}, v{cc+1}")
                a(f"v_cvt_pk_bf16_f32 v{cc+1}, v{cc+2}, v{cc+3}")
                a(f"buffer_store_dwordx2 v[{cc}:{cc+1}], v9, s[40:43], 0 offen offset:{tn*32}")

def gen_gemm1(a, K):
    return gen_gemm(a, K, 128, 96, 640, 5, 2, 2, 16, 16, ('C', L.XNB, 2048), ('C', L.WINB, 1536), Epi1(), pf=('wsp', 32768))
def gen_gemm2(a, K):
    return gen_gemm(a, K, 64, 96, 2048, 7, 2, 2, 32, 8, ('R', 4096), ('C', L.Z2NB, 768), Epi2(), pf=('wout', 30720))
def gen_gemm3(a, K, final):
    return gen_gemm(a, K, 64, 80, 768, 7, 4, 1, 32, 8, ('C', L.HB, 2048), ('C', L.WOUTB, 640), Epi3(final))
```

```python
import sys
import layout as L
import os
GDIAG = bool(os.environ.get('GDIAG'))

NAME = "interleave_layers__ssm_conv_h3__mixer_gmlp__prompt"
KA = dict(A_q=0, A_k=8, A_v=16, shift_k=24, ssm_k=32, ssm_D=40, B_x=48, w_in=56, w_sp=64, b_sp=72, w_out=80,
          out=88, dbg=96, ws=104)

class Asm:
    def __init__(self):
        self.lines = []
        self.kernels = []
        self.launches = []
        self.uid = 0
    def __call__(self, s):
        for ln in s.strip("\n").split("\n"):
            ln = ln.strip()
            if ln:
                self.lines.append("    " + ln)
    def label(self, l):
        self.lines.append(l + ":")
    def newlabel(self, base):
        self.uid += 1
        return f"L_{base}_{self.uid}"
    def begin(self, label):
        self.lines += [f".globl {label}", ".p2align 8", f".type {label},@function", f"{label}:"]
        if GDIAG:
            self("s_memrealtime s[96:97]")
            self("s_mov_b32 s95, s2")
    def end(self, label, vgpr, sgpr=102):
        if GDIAG:
            idx = len(self.kernels)
            self("s_mov_b64 exec, -1")
            self("s_waitcnt vmcnt(0) lgkmcnt(0)")
            self("s_memrealtime s[98:99]")
            self("s_load_dwordx2 s[88:89], s[0:1], 104")
            self("s_waitcnt lgkmcnt(0)")
            self(f"s_add_u32 s88, s88, {(80 << 20) + idx * (1 << 20)}")
            self("s_addc_u32 s89, s89, 0")
            self(f"s_mov_b32 s90, {1 << 20}")
            self("s_mov_b32 s91, 0x00020000")
            self("s_lshl_b32 s95, s95, 8")
            self("v_lshrrev_b32 v1, 6, v0")
            self("v_lshlrev_b32 v1, 4, v1")
            self("v_add_u32 v1, s95, v1")
            self("v_and_b32 v2, 63, v0")
            self("v_cmp_eq_u32 vcc, 0, v2")
            self("s_and_saveexec_b64 s[92:93], vcc")
            self("v_mov_b32 v4, s96"); self("v_mov_b32 v5, s97"); self("v_mov_b32 v6, s98"); self("v_mov_b32 v7, s99")
            self("buffer_store_dwordx4 v[4:7], v1, s[88:91], 0 offen")
            vgpr = max(vgpr, 8)
        self.lines.append("    s_endpgm")
        self.kernels.append((label, vgpr, sgpr))
    def launch(self, label, grid, block, lds):
        self.launches.append((label, grid, block, lds))
    def srd(self, d, base_lo, base_hi, nbytes, add=0):
        if add:
            self(f"s_add_u32 s{d}, s{base_lo}, {add}")
            self(f"s_addc_u32 s{d+1}, s{base_hi}, 0")
        else:
            self(f"s_mov_b32 s{d}, s{base_lo}")
            self(f"s_mov_b32 s{d+1}, s{base_hi}")
        self(f"s_mov_b32 s{d+2}, {nbytes}")
        self(f"s_mov_b32 s{d+3}, 0x00020000")
    def text(self):
        hdr = open(f"cdna_kernels/{NAME}.s.ref").read().split("; Override launch geometry")[0]
        out = [hdr.rstrip("\n")]
        for (label, g, b, lds) in self.launches:
            out.append(f"; @launch kernel={label} grid=({g},1,1) block=({b},1,1) lds={lds}")
        out.append('.amdgcn_target "amdgcn-amd-amdhsa--gfx950"')
        out.append(".text")
        out += self.lines
        out.append('.section .rodata,"a"')
        for (label, vgpr, sgpr) in self.kernels:
            acc = (vgpr + 3) // 4 * 4
            out += [".p2align 6", f".amdhsa_kernel {label}",
                    f"  .amdhsa_next_free_vgpr {vgpr}", f"  .amdhsa_next_free_sgpr {sgpr}",
                    f"  .amdhsa_accum_offset {acc}", "  .amdhsa_group_segment_fixed_size 0",
                    "  .amdhsa_kernarg_size 112", "  .amdhsa_user_sgpr_count 2",
                    "  .amdhsa_user_sgpr_kernarg_segment_ptr 1", "  .amdhsa_system_sgpr_workgroup_id_x 1",
                    ".end_amdhsa_kernel"]
        return "\n".join(out) + "\n"

a = Asm()

def unpack(dst_lo, dst_hi, src):
    a(f"v_lshlrev_b32 v{dst_lo}, 16, v{src}")
    a(f"v_and_b32 v{dst_hi}, 0xffff0000, v{src}")

def rnd2(x0, x1, tmp):
    a(f"v_cvt_pk_bf16_f32 v{tmp}, v{x0}, v{x1}")
    unpack(x0, x1, tmp)

def gen_prep():
    K = "prep_kernel"
    a.begin(K)
    a("s_cmp_ge_u32 s2, 344")
    a("s_cbranch_scc1 L_prep_end")
    a(f"s_load_dwordx2 s[4:5], s[0:1], {KA['ws']}")
    a("s_mov_b32 s30, 0x05040100")
    a("s_mov_b32 s31, 0x07060302")
    a("s_cmp_lt_u32 s2, 160")
    a("s_cbranch_scc0 L_prep_w")
    a(f"s_load_dwordx4 s[24:27], s[0:1], {KA['A_k']}")
    a(f"s_load_dwordx2 s[28:29], s[0:1], {KA['shift_k']}")
    a("s_mul_i32 s3, s2, 52429")
    a("s_lshr_b32 s3, s3, 18")
    a("s_mul_i32 s6, s3, 5")
    a("s_sub_u32 s6, s2, s6")
    a("s_lshl_b32 s6, s6, 6")
    a("s_lshl_b32 s3, s3, 3")
    a("v_and_b32 v1, 63, v0")
    a("v_add_u32 v1, s6, v1")
    a("v_lshrrev_b32 v2, 6, v0")
    a("v_add_u32 v2, s3, v2")
    a("v_mul_u32_u24 v3, 10240, v2")
    a("v_lshl_add_u32 v3, v1, 2, v3")
    a("v_lshlrev_b32 v4, 4, v1")
    a("s_waitcnt lgkmcnt(0)")
    a.srd(8, 24, 25, 2048 * 640 * 2)
    a.srd(12, 26, 27, 2048 * 640 * 2)
    a.srd(16, 28, 29, 640 * 4 * 2)
    a.srd(20, 4, 5, 640 * L.TS, L.URT)
    a("buffer_load_dwordx4 v[48:51], v4, s[16:19], 0 offen")
    for i in range(3):
        off = (i - 3) * 1280
        a(f"v_add_u32 v4, {off & 0xffffffff}, v3")
        a(f"buffer_load_dword v{10+i}, v4, s[8:11], 0 offen")
    a("v_add_u32 v4, 5120, v3")
    for i in range(8):
        a(f"buffer_load_dword v{13+i}, v{3 if i < 4 else 4}, s[8:11], 0 offen offset:{(i & 3) * 1280}")
    for i in range(8):
        a(f"buffer_load_dword v{30+i}, v{3 if i < 4 else 4}, s[12:15], 0 offen offset:{(i & 3) * 1280}")
    a("s_waitcnt vmcnt(8)")
    unpack(92, 94, 48); unpack(96, 98, 49); unpack(93, 95, 50); unpack(97, 99, 51)
    for i in range(11):
        unpack(52 + 2 * i, 53 + 2 * i, 10 + i)
    a("s_waitcnt vmcnt(0)")
    def pr(x): return f"v[{x}:{x+1}]"
    for i in range(8):
        a(f"v_pk_mul_f32 {pr(100)}, {pr(52+2*i)}, {pr(98)}")
        rnd2(100, 101, 104)
        for j in (2, 1, 0):
            ki = i + 3 - j
            a(f"v_pk_mul_f32 {pr(102)}, {pr(52+2*ki)}, {pr(92+2*j)}")
            rnd2(102, 103, 104)
            a(f"v_pk_add_f32 {pr(100)}, {pr(100)}, {pr(102)}")
            rnd2(100, 101, 104)
        unpack(102, 103, 30 + i)
        a(f"v_pk_mul_f32 {pr(100)}, {pr(100)}, {pr(102)}")
        a(f"v_cvt_pk_bf16_f32 v{110+i}, v100, v101")
    for m in range(4):
        a(f"v_perm_b32 v{120+m}, v{110+6-2*m}, v{110+7-2*m}, s30")
        a(f"v_perm_b32 v{124+m}, v{110+6-2*m}, v{110+7-2*m}, s31")
    a(f"v_mul_u32_u24 v4, {2*L.TS}, v1")
    a("v_lshlrev_b32 v5, 4, v2")
    a("v_sub_u32 v4, v4, v5")
    a("v_add_u32 v4, 4080, v4")
    a(f"v_add_u32 v5, {L.TS}, v4")
    a("buffer_store_dwordx4 v[120:123], v4, s[20:23], 0 offen")
    a("buffer_store_dwordx4 v[124:127], v5, s[20:23], 0 offen")
    a("s_branch L_prep_end")
    a.label("L_prep_w")
    a("s_cmp_lt_u32 s2, 280")
    a("s_cbranch_scc0 L_prep_c")
    a(f"s_load_dwordx2 s[24:25], s[0:1], {KA['w_in']}")
    a("s_sub_u32 s3, s2, 160")
    a("s_lshl_b32 s3, s3, 9")
    a("v_add_u32 v1, s3, v0")
    a("v_lshrrev_b32 v2, 8, v1")
    a("v_mul_u32_u24 v2, 21846, v2")
    a("v_lshrrev_b32 v2, 16, v2")
    a("v_mul_u32_u24 v3, 768, v2")
    a("v_sub_u32 v1, v1, v3")
    a("s_waitcnt lgkmcnt(0)")
    a.srd(8, 24, 25, 640 * 1536 * 2)
    a.srd(20, 4, 5, 640 * 1536 * 2, L.WINB)
    a("s_mov_b32 s34, 3072")
    a("s_mov_b32 s35, 1536")
    a("s_branch L_prep_wc")
    a.label("L_prep_c")
    a(f"s_load_dwordx2 s[24:25], s[0:1], {KA['w_out']}")
    a("s_sub_u32 s3, s2, 280")
    a("s_lshl_b32 s3, s3, 9")
    a("v_add_u32 v1, s3, v0")
    a("v_mul_u32_u24 v2, 52429, v1")
    a("v_lshrrev_b32 v2, 24, v2")
    a("v_mul_u32_u24 v3, 320, v2")
    a("v_sub_u32 v1, v1, v3")
    a("s_waitcnt lgkmcnt(0)")
    a.srd(8, 24, 25, 768 * 640 * 2)
    a.srd(20, 4, 5, 768 * 640 * 2, L.WOUTB)
    a("s_mov_b32 s34, 1280")
    a("s_mov_b32 s35, 640")
    a.label("L_prep_wc")
    a("v_lshlrev_b32 v3, 3, v2")
    a("v_mul_lo_u32 v3, v3, s34")
    a("v_lshl_add_u32 v3, v1, 2, v3")
    for i in range(8):
        a(f"buffer_load_dword v{10+i}, v3, s[8:11], 0 offen")
        if i < 7:
            a("v_add_u32 v3, s34, v3")
    a("v_mul_lo_u32 v4, v2, s35")
    a("v_lshl_add_u32 v4, v1, 1, v4")
    a("v_lshlrev_b32 v4, 4, v4")
    a("s_waitcnt vmcnt(0)")
    for m in range(4):
        a(f"v_perm_b32 v{20+m}, v{10+2*m+1}, v{10+2*m}, s30")
        a(f"v_perm_b32 v{24+m}, v{10+2*m+1}, v{10+2*m}, s31")
    a("buffer_store_dwordx4 v[20:23], v4, s[20:23], 0 offen")
    a("buffer_store_dwordx4 v[24:27], v4, s[20:23], 0 offen offset:16")
    a.label("L_prep_end")
    a.end(K, 128)
    a.launch(K, 344, 512, 0)

def gen_conv():
    K = "conv_kernel"
    CS = 4160
    UOFF = 8 * CS
    LDS = UOFF + 95 * 80
    a.begin(K)
    a("s_cmp_ge_u32 s2, 640")
    a("s_cbranch_scc1 L_conv_end")
    a(f"s_load_dwordx4 s[24:27], s[0:1], {KA['ssm_k']}")
    a(f"s_load_dwordx2 s[4:5], s[0:1], {KA['ws']}")
    a("s_lshl_b32 s3, s2, 12")
    a("s_waitcnt lgkmcnt(0)")
    a("s_add_u32 s24, s24, s3")
    a("s_addc_u32 s25, s25, 0")
    a.srd(8, 24, 25, 4096)
    a(f"s_mul_i32 s3, s2, {L.TS}")
    a("s_add_u32 s4, s4, s3")
    a("s_addc_u32 s5, s5, 0")
    a.srd(12, 4, 5, 4096, L.URT)
    a.srd(16, 4, 5, 4096, L.YT)
    a("s_and_b32 s6, s2, 0xfffffffe")
    a("s_lshl_b32 s6, s6, 1")
    a("s_load_dword s28, s[26:27], s6")
    a("v_lshlrev_b32 v2, 4, v0")
    a("buffer_load_dwordx4 v[48:51], v2, s[12:15], 0 offen")
    a("v_subrev_u32 v3, 80, v2")
    a("v_subrev_u32 v4, 64, v2")
    a("buffer_load_dwordx4 v[16:19], v3, s[8:11], 0 offen")
    a("buffer_load_dwordx4 v[20:23], v4, s[8:11], 0 offen")
    a("v_add_u32 v7, 4016, v2")
    a("buffer_load_dwordx4 v[56:59], v7, s[8:11], 0 offen")
    a("buffer_load_dwordx4 v[60:63], v7, s[8:11], 0 offen offset:16")
    def hfill(addr, B):
        for i in range(6):
            a(f"v_mov_b32 v{24+i}, v{B+1+i}")
        for i in range(7):
            a(f"v_alignbit_b32 v{30+i}, v{B+1+i}, v{B+i}, 16")
        for i in range(6):
            a(f"v_alignbit_b32 v{38+i}, v{B+2+i}, v{B+1+i}, 16")
        src = {0: 30, 2: 38, 4: 32, 6: 40, 1: 24, 3: B + 2, 5: 26, 7: B + 4}
        for j in range(8):
            a(f"ds_write_b128 v{addr}, v[{src[j]}:{src[j]+3}] offset:{j*CS}")
    a("v_lshrrev_b32 v5, 2, v0")
    a("v_mul_u32_u24 v5, 80, v5")
    a("v_and_b32 v6, 3, v0")
    a("v_lshl_add_u32 v5, v6, 4, v5")
    a("v_mov_b32 v52, 0"); a("v_mov_b32 v53, 0"); a("v_mov_b32 v54, 0"); a("v_mov_b32 v55, 0")
    a("v_cmp_gt_u32 vcc, 124, v0")
    a("s_and_saveexec_b64 s[30:31], vcc")
    a(f"ds_write_b128 v5, v[52:55] offset:{UOFF + 64*80}")
    a("s_mov_b64 exec, s[30:31]")
    a("s_waitcnt vmcnt(4)")
    a(f"ds_write_b128 v5, v[48:51] offset:{UOFF}")
    a("s_waitcnt vmcnt(2)")
    hfill(2, 16)
    a("v_add_u32 v7, 4096, v2")
    a("s_waitcnt vmcnt(0)")
    a("v_cmp_gt_u32 vcc, 4, v0")
    a("s_and_saveexec_b64 s[30:31], vcc")
    hfill(7, 56)
    a("s_mov_b64 exec, s[30:31]")
    a("v_and_b32 v1, 31, v0")
    a("v_bfe_u32 v2, v0, 5, 1")
    a("v_lshrrev_b32 v3, 6, v0")
    a("v_and_b32 v4, 7, v1")
    a(f"v_mul_u32_u24 v4, {CS}, v4")
    a("v_lshrrev_b32 v5, 3, v1")
    a("v_add_u32 v5, v5, v2")
    a("v_lshl_add_u32 v4, v5, 4, v4")
    a("v_lshl_add_u32 v4, v3, 9, v4")
    a("v_add_u32 v4, 16, v4")
    a("v_sub_u32 v5, 31, v1")
    a("v_mul_u32_u24 v5, 80, v5")
    a("v_lshl_add_u32 v5, v2, 4, v5")
    a("v_mul_u32_u24 v6, 640, v3")
    a("v_add_u32 v5, v5, v6")
    a(f"v_add_u32 v5, {UOFF}, v5")
    for i in range(32):
        a(f"v_mov_b32 v{64+i}, 0")
    a("s_waitcnt lgkmcnt(0)")
    a("s_barrier")
    steps = [(dl, c0) for dl in range(8) for c0 in (0, 16)]
    def reads(k, base):
        dl, c0 = steps[k]
        oa = 64 * dl + (32 if c0 == 0 else 0)
        ob = 80 * dl + (32 if c0 == 0 else 0)
        a(f"ds_read_b128 v[{base}:{base+3}], v4 offset:{oa}")
        a(f"ds_read_b128 v[{base+4}:{base+7}], v5 offset:{ob+2560}")
        a(f"ds_read_b128 v[{base+8}:{base+11}], v5 offset:{ob}")
        a(f"ds_read_b128 v[{base+12}:{base+15}], v4 offset:{oa+2048}")
    reads(0, 16)
    for k in range(16):
        base = 16 + 16 * (k & 1)
        if k + 1 < 16:
            reads(k + 1, 16 + 16 * ((k + 1) & 1))
            a("s_waitcnt lgkmcnt(4)")
        else:
            a("s_waitcnt lgkmcnt(0)")
        a(f"v_mfma_f32_32x32x16_bf16 v[64:79], v[{base}:{base+3}], v[{base+4}:{base+7}], v[64:79]")
        a(f"v_mfma_f32_32x32x16_bf16 v[80:95], v[{base}:{base+3}], v[{base+8}:{base+11}], v[80:95]")
        a(f"v_mfma_f32_32x32x16_bf16 v[80:95], v[{base+12}:{base+15}], v[{base+4}:{base+7}], v[80:95]")
    a("s_nop 15")
    a("s_barrier")
    a("v_and_b32 v6, 63, v0")
    a("v_lshlrev_b32 v6, 4, v6")
    a("v_lshl_add_u32 v7, v3, 13, v6")
    for q in range(8):
        a(f"ds_write_b128 v7, v[{64+4*q}:{67+4*q}] offset:{q*1024}")
    a("v_lshl_add_u32 v8, v3, 11, v6")
    a("s_waitcnt lgkmcnt(0)")
    a("s_barrier")
    for ww in range(4):
        for qq in range(2):
            r = 16 + (ww * 2 + qq) * 4
            a(f"ds_read_b128 v[{r}:{r+3}], v8 offset:{ww*8192 + qq*1024}")
    a("v_lshrrev_b32 v9, 1, v3")
    a("v_lshlrev_b32 v9, 10, v9")
    a("v_lshl_add_u32 v9, v1, 5, v9")
    a("v_and_b32 v10, 1, v3")
    a("v_lshl_add_u32 v9, v10, 4, v9")
    a("v_lshl_add_u32 v9, v2, 2, v9")
    for qq in range(2):
        a(f"v_sub_u32 v10, {2044 - 8*qq}, v9")
        a("v_lshrrev_b32 v11, 5, v10")
        a("v_mul_u32_u24 v11, 80, v11")
        a("v_and_b32 v10, 31, v10")
        a("v_lshl_add_u32 v11, v10, 1, v11")
        a(f"ds_read_b64 v[{48+2*qq}:{49+2*qq}], v11 offset:{UOFF}")
    a("s_and_b32 s6, s2, 1")
    a("s_cmp_eq_u32 s6, 1")
    a("s_cbranch_scc1 L_conv_odd")
    a("s_lshl_b32 s28, s28, 16")
    a.label("L_conv_odd")
    a("s_and_b32 s28, s28, 0xffff0000")
    a("s_waitcnt lgkmcnt(0)")
    for qq in range(2):
        for i in range(4):
            r = 16 + qq * 4 + i
            for ww in range(1, 4):
                a(f"v_add_f32 v{r}, v{r}, v{16 + (ww*2+qq)*4 + i}")
    for qq in range(2):
        r = 16 + qq * 4
        rnd2(r, r + 1, 60); rnd2(r + 2, r + 3, 60)
        unpack(55, 54, 48 + 2 * qq)
        unpack(53, 52, 49 + 2 * qq)
        for i in range(4):
            a(f"v_mul_f32 v{52+i}, s28, v{52+i}")
        rnd2(52, 53, 60); rnd2(54, 55, 60)
        for i in range(4):
            a(f"v_add_f32 v{r+i}, v{r+i}, v{52+i}")
        a(f"v_cvt_pk_bf16_f32 v{56+2*qq}, v{r}, v{r+1}")
        a(f"v_cvt_pk_bf16_f32 v{57+2*qq}, v{r+2}, v{r+3}")
    a("v_lshlrev_b32 v9, 1, v9")
    a("buffer_store_dwordx2 v[56:57], v9, s[16:19], 0 offen")
    a("buffer_store_dwordx2 v[58:59], v9, s[16:19], 0 offen offset:16")
    a.label("L_conv_end")
    a.end(K, 96)
    a.launch(K, 640, 256, LDS)

def wave_sum(v, sdst):
    a("s_nop 1")
    for sh in (1, 2, 4, 8):
        a(f"v_add_f32_dpp v{v}, v{v}, v{v} row_shr:{sh} row_mask:0xf bank_mask:0xf bound_ctrl:0")
        a("s_nop 1")
    a(f"v_add_f32_dpp v{v}, v{v}, v{v} row_bcast:15 row_mask:0xa bank_mask:0xf")
    a("s_nop 1")
    a(f"v_add_f32_dpp v{v}, v{v}, v{v} row_bcast:31 row_mask:0xc bank_mask:0xf")
    a("s_nop 1")
    a(f"v_readlane_b32 s{sdst}, v{v}, 63")
    a("s_nop 1")

def ln_stats(xs, N, t0, smb, srinv):
    def pr(x): return f"v[{x}:{x+1}]"
    n = len(xs)
    a(f"v_pk_add_f32 {pr(t0)}, {pr(xs[0])}, {pr(xs[2])}")
    for i in range(4, n, 2):
        a(f"v_pk_add_f32 {pr(t0)}, {pr(t0)}, {pr(xs[i])}")
    a(f"v_add_f32 v{t0}, v{t0}, v{t0+1}")
    wave_sum(t0, 40)
    a(f"v_mov_b32 v{t0}, s40")
    a(f"v_mul_f32 v{t0}, {-1.0/N!r}, v{t0}")
    a(f"v_mov_b32 v{t0+1}, v{t0}")
    for i in range(0, n, 2):
        a(f"v_pk_add_f32 {pr(t0+2)}, {pr(xs[i])}, {pr(t0)}")
        if i == 0:
            a(f"v_pk_mul_f32 {pr(t0+4)}, {pr(t0+2)}, {pr(t0+2)}")
        else:
            a(f"v_pk_fma_f32 {pr(t0+4)}, {pr(t0+2)}, {pr(t0+2)}, {pr(t0+4)}")
    a(f"v_add_f32 v{t0+2}, v{t0+4}, v{t0+5}")
    wave_sum(t0 + 2, 41)
    a(f"v_mov_b32 v{t0+1}, s41")
    a(f"v_mul_f32 v{t0+1}, {1.0/N!r}, v{t0+1}")
    rnd2(t0, t0 + 1, t0 + 2)
    a(f"v_add_f32 v{t0+1}, 0x3727c5ac, v{t0+1}")
    rnd2(t0 + 1, t0 + 1, t0 + 2)
    a(f"v_sqrt_f32 v{t0+1}, v{t0+1}")
    a("s_nop 0")
    rnd2(t0 + 1, t0 + 1, t0 + 2)
    a(f"v_rcp_f32 v{t0+2}, v{t0+1}")
    a(f"v_mov_b32 v{t0+1}, v{t0}")
    a(f"v_mov_b32 v{t0+3}, v{t0+2}")

def ln_apply(xs, dst, t0, tmp):
    def pr(x): return f"v[{x}:{x+1}]"
    for i in range(0, len(xs), 2):
        a(f"v_pk_add_f32 {pr(dst[i])}, {pr(xs[i])}, {pr(t0)}")
        rnd2(dst[i], dst[i + 1], tmp)
        a(f"v_pk_mul_f32 {pr(dst[i])}, {pr(dst[i])}, {pr(t0+2)}")
        rnd2(dst[i], dst[i + 1], tmp)

def gen_lnx(K, first):
    a.begin(K)
    E = f"L_{K}_end"
    def pr(x): return f"v[{x}:{x+1}]"
    a("s_cmp_ge_u32 s2, 256")
    a(f"s_cbranch_scc1 {E}")
    a(f"s_load_dwordx2 s[4:5], s[0:1], {KA['ws']}")
    a(f"s_load_dwordx2 s[6:7], s[0:1], {KA['A_q']}")
    a("s_and_b32 s3, s2, 7")
    a("s_lshl_b32 s3, s3, 5")
    a("s_lshr_b32 s2, s2, 3")
    a("s_add_u32 s2, s2, s3")
    a("v_and_b32 v1, 63, v0")
    a("v_lshrrev_b32 v2, 6, v0")
    a("s_lshl_b32 s3, s2, 3")
    a("s_lshl_b32 s24, s2, 4")
    a(f"v_mul_u32_u24 v3, {L.TS}, v0")
    a(f"v_add_u32 v4, {512*L.TS}, v3")
    a("v_add_u32 v5, s3, v2")
    a("v_mul_u32_u24 v8, 1280, v5")
    a("v_lshl_add_u32 v6, v1, 4, v8")
    a("v_lshl_add_u32 v8, v1, 2, v8")
    a("s_waitcnt lgkmcnt(0)")
    if first:
        a.srd(8, 6, 7, 2048 * 640 * 2)
    else:
        a.srd(8, 4, 5, 2048 * 640 * 2, L.X2)
    a.srd(12, 4, 5, 640 * L.TS, L.YT)
    a("buffer_load_dwordx4 v[40:43], v3, s[12:15], s24 offen")
    a("buffer_load_dwordx4 v[44:47], v4, s[12:15], s24 offen")
    a("buffer_load_dwordx4 v[48:51], v6, s[8:11], 0 offen")
    a("buffer_load_dword v52, v8, s[8:11], 0 offen offset:1024")
    NPF = 8 if os.environ.get("PF") else 0
    if NPF:
        a.srd(16, 4, 5, 640 * 1536 * 2, L.WINB)
        a("s_and_b32 s25, s2, 31")
        a("s_mul_i32 s25, s25, 61440")
        a("v_lshlrev_b32 v7, 4, v0")
        for q in range(NPF):
            a(f"buffer_load_dwordx4 v[{140+4*q}:{143+4*q}], v7, s[16:19], s25 offen")
            a("s_add_u32 s25, s25, 8192")
    a.srd(16, 4, 5, 2048 * 640 * 2, L.X1)
    a.srd(20, 4, 5, 2048 * 640 * 2, L.XNB)
    a("v_lshrrev_b32 v7, 3, v0")
    a("v_lshlrev_b32 v7, 2, v7")
    a("v_lshl_add_u32 v7, v0, 4, v7")
    a(f"s_waitcnt vmcnt({2+NPF})")
    a("ds_write2_b32 v7, v40, v41 offset0:0 offset1:1")
    a("ds_write2_b32 v7, v42, v43 offset0:2 offset1:3")
    a("v_cmp_gt_u32 vcc, 128, v0")
    a("s_and_saveexec_b64 s[30:31], vcc")
    a(f"v_add_u32 v9, {512*16 + 64*4}, v7")
    a("ds_write2_b32 v9, v44, v45 offset0:0 offset1:1")
    a("ds_write2_b32 v9, v46, v47 offset0:2 offset1:3")
    a("s_mov_b64 exec, s[30:31]")
    a("v_mul_u32_u24 v7, 132, v1")
    a("v_lshl_add_u32 v7, v2, 1, v7")
    a("v_lshrrev_b32 v9, 2, v1")
    a("v_lshlrev_b32 v9, 2, v9")
    a("v_lshl_add_u32 v9, v1, 5, v9")
    a("v_lshl_add_u32 v9, v2, 1, v9")
    a(f"s_waitcnt vmcnt({NPF}) lgkmcnt(0)")
    a("s_barrier")
    Y = list(range(80, 90))
    for i in range(8):
        a(f"ds_read_u16_d16_hi v{Y[i]}, v7 offset:{i*16}")
    for i in range(2):
        a(f"ds_read_u16_d16_hi v{Y[8+i]}, v9 offset:{512*16 + 64*4 + i*16}")
    X = list(range(60, 70))
    for i in range(5):
        unpack(X[2 * i], X[2 * i + 1], 48 + i)
    ln_stats(X, 640, 10, 42, 43)
    Q = list(range(100, 110))
    ln_apply(X, Q, 10, 16)
    a("s_waitcnt lgkmcnt(0)")
    for i in range(10):
        a(f"v_and_b32 v{Y[i]}, 0xffff0000, v{Y[i]}")
    for i in range(0, 10, 2):
        a(f"v_pk_mul_f32 {pr(Q[i])}, {pr(Q[i])}, {pr(Y[i])}")
        rnd2(Q[i], Q[i + 1], 16)
        a(f"v_pk_add_f32 {pr(X[i])}, {pr(X[i])}, {pr(Q[i])}")
        a(f"v_cvt_pk_bf16_f32 v{120+i//2}, v{X[i]}, v{X[i+1]}")
        unpack(X[i], X[i + 1], 120 + i // 2)
    a("buffer_store_dwordx4 v[120:123], v6, s[16:19], 0 offen")
    a("buffer_store_dword v124, v8, s[16:19], 0 offen offset:1024")
    ln_stats(X, 640, 10, 42, 43)
    ln_apply(X, Q, 10, 16)
    for i in range(0, 10, 2):
        a(f"v_cvt_pk_bf16_f32 v{128+i//2}, v{Q[i]}, v{Q[i+1]}")
    a("v_lshlrev_b32 v7, 15, v1")
    a("v_lshl_add_u32 v7, v5, 4, v7")
    a("buffer_store_dwordx4 v[128:131], v7, s[20:23], 0 offen")
    a("v_lshrrev_b32 v7, 2, v1")
    a("v_lshlrev_b32 v7, 15, v7")
    a("v_lshl_add_u32 v7, v5, 4, v7")
    a("v_and_b32 v9, 3, v1")
    a("v_lshl_add_u32 v7, v9, 2, v7")
    a("v_add_u32 v7, 0x200000, v7")
    a("buffer_store_dword v132, v7, s[20:23], 0 offen")
    a.label(E)
    a.end(K, 176)
    a.launch(K, 256, 512, 640 * 16 + 80 * 4)

def gen_lnz(K):
    a.begin(K)
    E = f"L_{K}_end"
    a("s_cmp_ge_u32 s2, 256")
    a(f"s_cbranch_scc1 {E}")
    a(f"s_load_dwordx2 s[4:5], s[0:1], {KA['ws']}")
    a("s_and_b32 s3, s2, 7")
    a("s_lshl_b32 s3, s3, 5")
    a("s_lshr_b32 s2, s2, 3")
    a("s_add_u32 s2, s2, s3")
    a("v_and_b32 v1, 63, v0")
    a("v_lshrrev_b32 v2, 6, v0")
    a("s_lshl_b32 s3, s2, 3")
    a("v_add_u32 v5, s3, v2")
    a("v_mul_u32_u24 v8, 1536, v5")
    a("v_lshl_add_u32 v6, v1, 4, v8")
    a("v_lshl_add_u32 v8, v1, 3, v8")
    a("s_waitcnt lgkmcnt(0)")
    a.srd(8, 4, 5, 2048 * 768 * 2, L.Z2)
    a("buffer_load_dwordx4 v[48:51], v6, s[8:11], 0 offen")
    a("buffer_load_dwordx2 v[52:53], v8, s[8:11], 0 offen offset:1024")
    a.srd(12, 4, 5, 2048 * 768 * 2, L.Z2NB)
    a("v_mul_u32_u24 v7, 132, v1")
    a("v_lshl_add_u32 v7, v2, 1, v7")
    a("v_lshrrev_b32 v9, 1, v1")
    a("v_lshlrev_b32 v9, 2, v9")
    a("v_lshl_add_u32 v9, v1, 6, v9")
    a("v_lshl_add_u32 v9, v2, 1, v9")
    a("s_waitcnt vmcnt(0)")
    X = list(range(60, 72))
    for i in range(6):
        unpack(X[2 * i], X[2 * i + 1], 48 + i)
    ln_stats(X, 768, 10, 42, 43)
    Q = list(range(100, 112))
    ln_apply(X, Q, 10, 16)
    for i in range(8):
        a(f"ds_write_b16_d16_hi v7, v{Q[i]} offset:{i*16}")
    for i in range(4):
        a(f"ds_write_b16_d16_hi v9, v{Q[8+i]} offset:{64*132 + i*16}")
    a("v_lshrrev_b32 v7, 3, v0")
    a("v_lshlrev_b32 v7, 2, v7")
    a("v_lshl_add_u32 v7, v0, 4, v7")
    a("s_mul_i32 s24, s2, 12288")
    a("v_lshlrev_b32 v8, 4, v0")
    a("s_waitcnt lgkmcnt(0)")
    a("s_barrier")
    a("ds_read2_b32 v[20:21], v7 offset0:0 offset1:1")
    a("ds_read2_b32 v[22:23], v7 offset0:2 offset1:3")
    a("v_cmp_gt_u32 vcc, 256, v0")
    a("s_and_saveexec_b64 s[30:31], vcc")
    a(f"v_add_u32 v7, {64*132}, v7")
    a("ds_read2_b32 v[24:25], v7 offset0:0 offset1:1")
    a("ds_read2_b32 v[26:27], v7 offset0:2 offset1:3")
    a("s_waitcnt lgkmcnt(0)")
    a("v_add_u32 v10, 8192, v8")
    a("buffer_store_dwordx4 v[24:27], v10, s[12:15], s24 offen")
    a("s_mov_b64 exec, s[30:31]")
    a("s_waitcnt lgkmcnt(0)")
    a("buffer_store_dwordx4 v[20:23], v8, s[12:15], s24 offen")
    a.label(E)
    a.end(K, 120)
    a.launch(K, 256, 512, 96 * 132)

def main():
    import gemm
    gen_prep()
    gen_conv()
    for layer in range(2):
        sfx = str(layer) if (GDIAG or layer == 0) else None
        gen_lnx(f"lnx{layer}_kernel", layer == 0)
        if sfx is not None:
            n1 = f"gemm1_{sfx}_kernel"; l1 = gemm.gen_gemm1(a, n1)
        a.launch(n1, 256, 512, l1)
        if os.environ.get("DUP") and layer == 0:
            n1b = "gemm1_dup_kernel"; gemm.gen_gemm1(a, n1b); a.launch(n1b, 256, 512, l1)
        if sfx is not None:
            nz = f"lnz{sfx}_kernel"; gen_lnz(nz)
        else:
            a.launch(nz, 256, 512, 96 * 132)
        if sfx is not None:
            n2 = f"gemm2_{sfx}_kernel"; l2 = gemm.gen_gemm2(a, n2)
        a.launch(n2, 256, 512, l2)
        if os.environ.get("DUP") and layer == 0:
            n2b = "gemm2_dup_kernel"; gemm.gen_gemm2(a, n2b); a.launch(n2b, 256, 512, l2)
        n3 = f"gemm3_{layer}_kernel"; l3 = gemm.gen_gemm3(a, n3, layer == 1); a.launch(n3, 256, 512, l3)
        if os.environ.get("DUP") and layer == 0:
            n3b = "gemm3_dup_kernel"; gemm.gen_gemm3(a, n3b, False); a.launch(n3b, 256, 512, l3)
    open(sys.argv[1] if len(sys.argv) > 1 else f"cdna_kernels/{NAME}.s", "w").write(a.text())

if __name__ == "__main__":
    import gen
    gen.main()
```

```python
import sys
import layout as L
import os
GDIAG = bool(os.environ.get('GDIAG'))

NAME = "interleave_layers__ssm_conv_h3__mixer_gmlp__prompt"
KA = dict(A_q=0, A_k=8, A_v=16, shift_k=24, ssm_k=32, ssm_D=40, B_x=48, w_in=56, w_sp=64, b_sp=72, w_out=80,
          out=88, dbg=96, ws=104)

class Asm:
    def __init__(self):
        self.lines = []
        self.kernels = []
        self.launches = []
        self.uid = 0
    def __call__(self, s):
        for ln in s.strip("\n").split("\n"):
            ln = ln.strip()
            if ln:
                self.lines.append("    " + ln)
    def label(self, l):
        self.lines.append(l + ":")
    def newlabel(self, base):
        self.uid += 1
        return f"L_{base}_{self.uid}"
    def begin(self, label):
        self.lines += [f".globl {label}", ".p2align 8", f".type {label},@function", f"{label}:"]
        if GDIAG:
            self("s_memrealtime s[96:97]")
            self("s_mov_b32 s95, s2")
    def end(self, label, vgpr, sgpr=102):
        if GDIAG:
            idx = len(self.kernels)
            self("s_mov_b64 exec, -1")
            self("s_waitcnt vmcnt(0) lgkmcnt(0)")
            self("s_memrealtime s[98:99]")
            self("s_load_dwordx2 s[88:89], s[0:1], 104")
            self("s_waitcnt lgkmcnt(0)")
            self(f"s_add_u32 s88, s88, {(80 << 20) + idx * (1 << 20)}")
            self("s_addc_u32 s89, s89, 0")
            self(f"s_mov_b32 s90, {1 << 20}")
            self("s_mov_b32 s91, 0x00020000")
            self("s_lshl_b32 s95, s95, 8")
            self("v_lshrrev_b32 v1, 6, v0")
            self("v_lshlrev_b32 v1, 4, v1")
            self("v_add_u32 v1, s95, v1")
            self("v_and_b32 v2, 63, v0")
            self("v_cmp_eq_u32 vcc, 0, v2")
            self("s_and_saveexec_b64 s[92:93], vcc")
            self("v_mov_b32 v4, s96"); self("v_mov_b32 v5, s97"); self("v_mov_b32 v6, s98"); self("v_mov_b32 v7, s99")
            self("buffer_store_dwordx4 v[4:7], v1, s[88:91], 0 offen")
            vgpr = max(vgpr, 8)
        self.lines.append("    s_endpgm")
        self.kernels.append((label, vgpr, sgpr))
    def launch(self, label, grid, block, lds):
        self.launches.append((label, grid, block, lds))
    def srd(self, d, base_lo, base_hi, nbytes, add=0):
        if add:
            self(f"s_add_u32 s{d}, s{base_lo}, {add}")
            self(f"s_addc_u32 s{d+1}, s{base_hi}, 0")
        else:
            self(f"s_mov_b32 s{d}, s{base_lo}")
            self(f"s_mov_b32 s{d+1}, s{base_hi}")
        self(f"s_mov_b32 s{d+2}, {nbytes}")
        self(f"s_mov_b32 s{d+3}, 0x00020000")
    def text(self):
        hdr = open(f"cdna_kernels/{NAME}.s.ref").read().split("; Override launch geometry")[0]
        out = [hdr.rstrip("\n")]
        for (label, g, b, lds) in self.launches:
            out.append(f"; @launch kernel={label} grid=({g},1,1) block=({b},1,1) lds={lds}")
        out.append('.amdgcn_target "amdgcn-amd-amdhsa--gfx950"')
        out.append(".text")
        out += self.lines
        out.append('.section .rodata,"a"')
        for (label, vgpr, sgpr) in self.kernels:
            acc = (vgpr + 3) // 4 * 4
            out += [".p2align 6", f".amdhsa_kernel {label}",
                    f"  .amdhsa_next_free_vgpr {vgpr}", f"  .amdhsa_next_free_sgpr {sgpr}",
                    f"  .amdhsa_accum_offset {acc}", "  .amdhsa_group_segment_fixed_size 0",
                    "  .amdhsa_kernarg_size 112", "  .amdhsa_user_sgpr_count 2",
                    "  .amdhsa_user_sgpr_kernarg_segment_ptr 1", "  .amdhsa_system_sgpr_workgroup_id_x 1",
                    ".end_amdhsa_kernel"]
        return "\n".join(out) + "\n"

a = Asm()

def unpack(dst_lo, dst_hi, src):
    a(f"v_lshlrev_b32 v{dst_lo}, 16, v{src}")
    a(f"v_and_b32 v{dst_hi}, 0xffff0000, v{src}")

def rnd2(x0, x1, tmp):
    a(f"v_cvt_pk_bf16_f32 v{tmp}, v{x0}, v{x1}")
    unpack(x0, x1, tmp)

def gen_prep():
    K = "prep_kernel"
    a.begin(K)
    a("s_cmp_ge_u32 s2, 424")
    a("s_cbranch_scc1 L_prep_end")
    a("s_cmp_ge_u32 s2, 344")
    a("s_cbranch_scc1 L_prep_touch")
    a(f"s_load_dwordx2 s[4:5], s[0:1], {KA['ws']}")
    a("s_mov_b32 s30, 0x05040100")
    a("s_mov_b32 s31, 0x07060302")
    a("s_cmp_lt_u32 s2, 160")
    a("s_cbranch_scc0 L_prep_w")
    a(f"s_load_dwordx4 s[24:27], s[0:1], {KA['A_k']}")
    a(f"s_load_dwordx2 s[28:29], s[0:1], {KA['shift_k']}")
    a("s_mul_i32 s3, s2, 52429")
    a("s_lshr_b32 s3, s3, 18")
    a("s_mul_i32 s6, s3, 5")
    a("s_sub_u32 s6, s2, s6")
    a("s_lshl_b32 s6, s6, 6")
    a("s_lshl_b32 s3, s3, 3")
    a("v_and_b32 v1, 63, v0")
    a("v_add_u32 v1, s6, v1")
    a("v_lshrrev_b32 v2, 6, v0")
    a("v_add_u32 v2, s3, v2")
    a("v_mul_u32_u24 v3, 10240, v2")
    a("v_lshl_add_u32 v3, v1, 2, v3")
    a("v_lshlrev_b32 v4, 4, v1")
    a("s_waitcnt lgkmcnt(0)")
    a.srd(8, 24, 25, 2048 * 640 * 2)
    a.srd(12, 26, 27, 2048 * 640 * 2)
    a.srd(16, 28, 29, 640 * 4 * 2)
    a.srd(20, 4, 5, 640 * L.TS, L.URT)
    a("buffer_load_dwordx4 v[48:51], v4, s[16:19], 0 offen")
    for i in range(3):
        off = (i - 3) * 1280
        a(f"v_add_u32 v4, {off & 0xffffffff}, v3")
        a(f"buffer_load_dword v{10+i}, v4, s[8:11], 0 offen")
    a("v_add_u32 v4, 5120, v3")
    for i in range(8):
        a(f"buffer_load_dword v{13+i}, v{3 if i < 4 else 4}, s[8:11], 0 offen offset:{(i & 3) * 1280}")
    for i in range(8):
        a(f"buffer_load_dword v{30+i}, v{3 if i < 4 else 4}, s[12:15], 0 offen offset:{(i & 3) * 1280}")
    a("s_waitcnt vmcnt(8)")
    unpack(92, 94, 48); unpack(96, 98, 49); unpack(93, 95, 50); unpack(97, 99, 51)
    for i in range(11):
        unpack(52 + 2 * i, 53 + 2 * i, 10 + i)
    a("s_waitcnt vmcnt(0)")
    def pr(x): return f"v[{x}:{x+1}]"
    for i in range(8):
        a(f"v_pk_mul_f32 {pr(100)}, {pr(52+2*i)}, {pr(98)}")
        rnd2(100, 101, 104)
        for j in (2, 1, 0):
            ki = i + 3 - j
            a(f"v_pk_mul_f32 {pr(102)}, {pr(52+2*ki)}, {pr(92+2*j)}")
            rnd2(102, 103, 104)
            a(f"v_pk_add_f32 {pr(100)}, {pr(100)}, {pr(102)}")
            rnd2(100, 101, 104)
        unpack(102, 103, 30 + i)
        a(f"v_pk_mul_f32 {pr(100)}, {pr(100)}, {pr(102)}")
        a(f"v_cvt_pk_bf16_f32 v{110+i}, v100, v101")
    for m in range(4):
        a(f"v_perm_b32 v{120+m}, v{110+6-2*m}, v{110+7-2*m}, s30")
        a(f"v_perm_b32 v{124+m}, v{110+6-2*m}, v{110+7-2*m}, s31")
    a(f"v_mul_u32_u24 v4, {2*L.TS}, v1")
    a("v_lshlrev_b32 v5, 4, v2")
    a("v_sub_u32 v4, v4, v5")
    a("v_add_u32 v4, 4080, v4")
    a(f"v_add_u32 v5, {L.TS}, v4")
    a("buffer_store_dwordx4 v[120:123], v4, s[20:23], 0 offen")
    a("buffer_store_dwordx4 v[124:127], v5, s[20:23], 0 offen")
    a("s_branch L_prep_end")
    a.label("L_prep_w")
    a("s_cmp_lt_u32 s2, 280")
    a("s_cbranch_scc0 L_prep_c")
    a(f"s_load_dwordx2 s[24:25], s[0:1], {KA['w_in']}")
    a("s_sub_u32 s3, s2, 160")
    a("s_lshl_b32 s3, s3, 9")
    a("v_add_u32 v1, s3, v0")
    a("v_lshrrev_b32 v2, 8, v1")
    a("v_mul_u32_u24 v2, 21846, v2")
    a("v_lshrrev_b32 v2, 16, v2")
    a("v_mul_u32_u24 v3, 768, v2")
    a("v_sub_u32 v1, v1, v3")
    a("s_waitcnt lgkmcnt(0)")
    a.srd(8, 24, 25, 640 * 1536 * 2)
    a.srd(20, 4, 5, 640 * 1536 * 2, L.WINB)
    a("s_mov_b32 s34, 3072")
    a("s_mov_b32 s35, 1536")
    a("s_branch L_prep_wc")
    a.label("L_prep_c")
    a(f"s_load_dwordx2 s[24:25], s[0:1], {KA['w_out']}")
    a("s_sub_u32 s3, s2, 280")
    a("s_lshl_b32 s3, s3, 9")
    a("v_add_u32 v1, s3, v0")
    a("v_mul_u32_u24 v2, 52429, v1")
    a("v_lshrrev_b32 v2, 24, v2")
    a("v_mul_u32_u24 v3, 320, v2")
    a("v_sub_u32 v1, v1, v3")
    a("s_waitcnt lgkmcnt(0)")
    a.srd(8, 24, 25, 768 * 640 * 2)
    a.srd(20, 4, 5, 768 * 640 * 2, L.WOUTB)
    a("s_mov_b32 s34, 1280")
    a("s_mov_b32 s35, 640")
    a.label("L_prep_wc")
    a("v_lshlrev_b32 v3, 3, v2")
    a("v_mul_lo_u32 v3, v3, s34")
    a("v_lshl_add_u32 v3, v1, 2, v3")
    for i in range(8):
        a(f"buffer_load_dword v{10+i}, v3, s[8:11], 0 offen")
        if i < 7:
            a("v_add_u32 v3, s34, v3")
    a("v_mul_lo_u32 v4, v2, s35")
    a("v_lshl_add_u32 v4, v1, 1, v4")
    a("v_lshlrev_b32 v4, 4, v4")
    a("s_waitcnt vmcnt(0)")
    for m in range(4):
        a(f"v_perm_b32 v{20+m}, v{10+2*m+1}, v{10+2*m}, s30")
        a(f"v_perm_b32 v{24+m}, v{10+2*m+1}, v{10+2*m}, s31")
    a("buffer_store_dwordx4 v[20:23], v4, s[20:23], 0 offen")
    a("buffer_store_dwordx4 v[24:27], v4, s[20:23], 0 offen offset:16")
    a("s_branch L_prep_end")
    a.label("L_prep_touch")
    a("s_sub_u32 s3, s2, 344")
    a(f"s_mov_b32 s6, {KA['A_q']}")
    a("s_cmp_lt_u32 s3, 40")
    a("s_cbranch_scc1 L_prep_t2")
    a("s_sub_u32 s3, s3, 40")
    a(f"s_mov_b32 s6, {KA['ssm_k']}")
    a.label("L_prep_t2")
    a("s_load_dwordx2 s[8:9], s[0:1], s6")
    a("s_lshl_b32 s3, s3, 16")
    a("v_lshlrev_b32 v1, 4, v0")
    a(f"s_mov_b32 s10, {2048*640*2}")
    a("s_mov_b32 s11, 0x00020000")
    a("s_waitcnt lgkmcnt(0)")
    for q in range(8):
        a(f"buffer_load_dwordx4 v[{8+4*q}:{11+4*q}], v1, s[8:11], s3 offen")
        a("s_add_u32 s3, s3, 8192")
    a.label("L_prep_end")
    a.end(K, 128)
    a.launch(K, 424, 512, 0)

def gen_conv():
    K = "conv_kernel"
    CS = 4160
    UOFF = 8 * CS
    LDS = UOFF + 95 * 80
    a.begin(K)
    a("s_cmp_ge_u32 s2, 640")
    a("s_cbranch_scc1 L_conv_end")
    a(f"s_load_dwordx4 s[24:27], s[0:1], {KA['ssm_k']}")
    a(f"s_load_dwordx2 s[4:5], s[0:1], {KA['ws']}")
    a(f"s_load_dwordx2 s[36:37], s[0:1], {KA['w_sp']}")
    a("s_lshl_b32 s3, s2, 12")
    a("s_waitcnt lgkmcnt(0)")
    a("s_add_u32 s24, s24, s3")
    a("s_addc_u32 s25, s25, 0")
    a.srd(8, 24, 25, 4096)
    a(f"s_mul_i32 s3, s2, {L.TS}")
    a("s_add_u32 s4, s4, s3")
    a("s_addc_u32 s5, s5, 0")
    a.srd(12, 4, 5, 4096, L.URT)
    a.srd(16, 4, 5, 4096, L.YT)
    a("s_and_b32 s6, s2, 0xfffffffe")
    a("s_lshl_b32 s6, s6, 1")
    a("s_load_dword s28, s[26:27], s6")
    a("v_lshlrev_b32 v2, 4, v0")
    a("buffer_load_dwordx4 v[48:51], v2, s[12:15], 0 offen")
    a("v_subrev_u32 v3, 80, v2")
    a("v_subrev_u32 v4, 64, v2")
    a("buffer_load_dwordx4 v[16:19], v3, s[8:11], 0 offen")
    a("buffer_load_dwordx4 v[20:23], v4, s[8:11], 0 offen")
    a("v_add_u32 v7, 4016, v2")
    a("buffer_load_dwordx4 v[56:59], v7, s[8:11], 0 offen")
    a("buffer_load_dwordx4 v[60:63], v7, s[8:11], 0 offen offset:16")
    a(f"s_mov_b32 s38, {2048*2048*2}")
    a("s_mov_b32 s39, 0x00020000")
    a("s_lshl_b32 s3, s2, 14")
    for q in range(4):
        a(f"buffer_load_dwordx4 v[{96+4*q}:{99+4*q}], v2, s[36:39], s3 offen")
        a("s_add_u32 s3, s3, 4096")
    def hfill(addr, B):
        for i in range(6):
            a(f"v_mov_b32 v{24+i}, v{B+1+i}")
        for i in range(7):
            a(f"v_alignbit_b32 v{30+i}, v{B+1+i}, v{B+i}, 16")
        for i in range(6):
            a(f"v_alignbit_b32 v{38+i}, v{B+2+i}, v{B+1+i}, 16")
        src = {0: 30, 2: 38, 4: 32, 6: 40, 1: 24, 3: B + 2, 5: 26, 7: B + 4}
        for j in range(8):
            a(f"ds_write_b128 v{addr}, v[{src[j]}:{src[j]+3}] offset:{j*CS}")
    a("v_lshrrev_b32 v5, 2, v0")
    a("v_mul_u32_u24 v5, 80, v5")
    a("v_and_b32 v6, 3, v0")
    a("v_lshl_add_u32 v5, v6, 4, v5")
    a("v_mov_b32 v52, 0"); a("v_mov_b32 v53, 0"); a("v_mov_b32 v54, 0"); a("v_mov_b32 v55, 0")
    a("v_cmp_gt_u32 vcc, 124, v0")
    a("s_and_saveexec_b64 s[30:31], vcc")
    a(f"ds_write_b128 v5, v[52:55] offset:{UOFF + 64*80}")
    a("s_mov_b64 exec, s[30:31]")
    a("s_waitcnt vmcnt(8)")
    a(f"ds_write_b128 v5, v[48:51] offset:{UOFF}")
    a("s_waitcnt vmcnt(6)")
    hfill(2, 16)
    a("v_add_u32 v7, 4096, v2")
    a("s_waitcnt vmcnt(4)")
    a("v_cmp_gt_u32 vcc, 4, v0")
    a("s_and_saveexec_b64 s[30:31], vcc")
    hfill(7, 56)
    a("s_mov_b64 exec, s[30:31]")
    a("v_and_b32 v1, 31, v0")
    a("v_bfe_u32 v2, v0, 5, 1")
    a("v_lshrrev_b32 v3, 6, v0")
    a("v_and_b32 v4, 7, v1")
    a(f"v_mul_u32_u24 v4, {CS}, v4")
    a("v_lshrrev_b32 v5, 3, v1")
    a("v_add_u32 v5, v5, v2")
    a("v_lshl_add_u32 v4, v5, 4, v4")
    a("v_lshl_add_u32 v4, v3, 9, v4")
    a("v_add_u32 v4, 16, v4")
    a("v_sub_u32 v5, 31, v1")
    a("v_mul_u32_u24 v5, 80, v5")
    a("v_lshl_add_u32 v5, v2, 4, v5")
    a("v_mul_u32_u24 v6, 640, v3")
    a("v_add_u32 v5, v5, v6")
    a(f"v_add_u32 v5, {UOFF}, v5")
    for i in range(32):
        a(f"v_mov_b32 v{64+i}, 0")
    a("s_waitcnt lgkmcnt(0)")
    a("s_barrier")
    steps = [(dl, c0) for dl in range(8) for c0 in (0, 16)]
    def reads(k, base):
        dl, c0 = steps[k]
        oa = 64 * dl + (32 if c0 == 0 else 0)
        ob = 80 * dl + (32 if c0 == 0 else 0)
        a(f"ds_read_b128 v[{base}:{base+3}], v4 offset:{oa}")
        a(f"ds_read_b128 v[{base+4}:{base+7}], v5 offset:{ob+2560}")
        a(f"ds_read_b128 v[{base+8}:{base+11}], v5 offset:{ob}")
        a(f"ds_read_b128 v[{base+12}:{base+15}], v4 offset:{oa+2048}")
    reads(0, 16)
    for k in range(16):
        base = 16 + 16 * (k & 1)
        if k + 1 < 16:
            reads(k + 1, 16 + 16 * ((k + 1) & 1))
            a("s_waitcnt lgkmcnt(4)")
        else:
            a("s_waitcnt lgkmcnt(0)")
        a(f"v_mfma_f32_32x32x16_bf16 v[64:79], v[{base}:{base+3}], v[{base+4}:{base+7}], v[64:79]")
        a(f"v_mfma_f32_32x32x16_bf16 v[80:95], v[{base}:{base+3}], v[{base+8}:{base+11}], v[80:95]")
        a(f"v_mfma_f32_32x32x16_bf16 v[80:95], v[{base+12}:{base+15}], v[{base+4}:{base+7}], v[80:95]")
    a("s_nop 15")
    a("s_barrier")
    a("v_and_b32 v6, 63, v0")
    a("v_lshlrev_b32 v6, 4, v6")
    a("v_lshl_add_u32 v7, v3, 13, v6")
    for q in range(8):
        a(f"ds_write_b128 v7, v[{64+4*q}:{67+4*q}] offset:{q*1024}")
    a("v_lshl_add_u32 v8, v3, 11, v6")
    a("s_waitcnt lgkmcnt(0)")
    a("s_barrier")
    for ww in range(4):
        for qq in range(2):
            r = 16 + (ww * 2 + qq) * 4
            a(f"ds_read_b128 v[{r}:{r+3}], v8 offset:{ww*8192 + qq*1024}")
    a("v_lshrrev_b32 v9, 1, v3")
    a("v_lshlrev_b32 v9, 10, v9")
    a("v_lshl_add_u32 v9, v1, 5, v9")
    a("v_and_b32 v10, 1, v3")
    a("v_lshl_add_u32 v9, v10, 4, v9")
    a("v_lshl_add_u32 v9, v2, 2, v9")
    for qq in range(2):
        a(f"v_sub_u32 v10, {2044 - 8*qq}, v9")
        a("v_lshrrev_b32 v11, 5, v10")
        a("v_mul_u32_u24 v11, 80, v11")
        a("v_and_b32 v10, 31, v10")
        a("v_lshl_add_u32 v11, v10, 1, v11")
        a(f"ds_read_b64 v[{48+2*qq}:{49+2*qq}], v11 offset:{UOFF}")
    a("s_and_b32 s6, s2, 1")
    a("s_cmp_eq_u32 s6, 1")
    a("s_cbranch_scc1 L_conv_odd")
    a("s_lshl_b32 s28, s28, 16")
    a.label("L_conv_odd")
    a("s_and_b32 s28, s28, 0xffff0000")
    a("s_waitcnt lgkmcnt(0)")
    for qq in range(2):
        for i in range(4):
            r = 16 + qq * 4 + i
            for ww in range(1, 4):
                a(f"v_add_f32 v{r}, v{r}, v{16 + (ww*2+qq)*4 + i}")
    for qq in range(2):
        r = 16 + qq * 4
        rnd2(r, r + 1, 60); rnd2(r + 2, r + 3, 60)
        unpack(55, 54, 48 + 2 * qq)
        unpack(53, 52, 49 + 2 * qq)
        for i in range(4):
            a(f"v_mul_f32 v{52+i}, s28, v{52+i}")
        rnd2(52, 53, 60); rnd2(54, 55, 60)
        for i in range(4):
            a(f"v_add_f32 v{r+i}, v{r+i}, v{52+i}")
        a(f"v_cvt_pk_bf16_f32 v{56+2*qq}, v{r}, v{r+1}")
        a(f"v_cvt_pk_bf16_f32 v{57+2*qq}, v{r+2}, v{r+3}")
    a("v_lshlrev_b32 v9, 1, v9")
    a("buffer_store_dwordx2 v[56:57], v9, s[16:19], 0 offen")
    a("buffer_store_dwordx2 v[58:59], v9, s[16:19], 0 offen offset:16")
    a.label("L_conv_end")
    a.end(K, 112)
    a.launch(K, 640, 256, LDS)

def wave_sum(v, sdst):
    a("s_nop 1")
    for sh in (1, 2, 4, 8):
        a(f"v_add_f32_dpp v{v}, v{v}, v{v} row_shr:{sh} row_mask:0xf bank_mask:0xf bound_ctrl:0")
        a("s_nop 1")
    a(f"v_add_f32_dpp v{v}, v{v}, v{v} row_bcast:15 row_mask:0xa bank_mask:0xf")
    a("s_nop 1")
    a(f"v_add_f32_dpp v{v}, v{v}, v{v} row_bcast:31 row_mask:0xc bank_mask:0xf")
    a("s_nop 1")
    a(f"v_readlane_b32 s{sdst}, v{v}, 63")
    a("s_nop 1")

def ln_stats(xs, N, t0, smb, srinv):
    def pr(x): return f"v[{x}:{x+1}]"
    n = len(xs)
    a(f"v_pk_add_f32 {pr(t0)}, {pr(xs[0])}, {pr(xs[2])}")
    for i in range(4, n, 2):
        a(f"v_pk_add_f32 {pr(t0)}, {pr(t0)}, {pr(xs[i])}")
    a(f"v_add_f32 v{t0}, v{t0}, v{t0+1}")
    wave_sum(t0, 40)
    a(f"v_mov_b32 v{t0}, s40")
    a(f"v_mul_f32 v{t0}, {-1.0/N!r}, v{t0}")
    a(f"v_mov_b32 v{t0+1}, v{t0}")
    for i in range(0, n, 2):
        a(f"v_pk_add_f32 {pr(t0+2)}, {pr(xs[i])}, {pr(t0)}")
        if i == 0:
            a(f"v_pk_mul_f32 {pr(t0+4)}, {pr(t0+2)}, {pr(t0+2)}")
        else:
            a(f"v_pk_fma_f32 {pr(t0+4)}, {pr(t0+2)}, {pr(t0+2)}, {pr(t0+4)}")
    a(f"v_add_f32 v{t0+2}, v{t0+4}, v{t0+5}")
    wave_sum(t0 + 2, 41)
    a(f"v_mov_b32 v{t0+1}, s41")
    a(f"v_mul_f32 v{t0+1}, {1.0/N!r}, v{t0+1}")
    rnd2(t0, t0 + 1, t0 + 2)
    a(f"v_add_f32 v{t0+1}, 0x3727c5ac, v{t0+1}")
    rnd2(t0 + 1, t0 + 1, t0 + 2)
    a(f"v_sqrt_f32 v{t0+1}, v{t0+1}")
    a("s_nop 0")
    rnd2(t0 + 1, t0 + 1, t0 + 2)
    a(f"v_rcp_f32 v{t0+2}, v{t0+1}")
    a(f"v_mov_b32 v{t0+1}, v{t0}")
    a(f"v_mov_b32 v{t0+3}, v{t0+2}")

def ln_apply(xs, dst, t0, tmp):
    def pr(x): return f"v[{x}:{x+1}]"
    for i in range(0, len(xs), 2):
        a(f"v_pk_add_f32 {pr(dst[i])}, {pr(xs[i])}, {pr(t0)}")
        rnd2(dst[i], dst[i + 1], tmp)
        a(f"v_pk_mul_f32 {pr(dst[i])}, {pr(dst[i])}, {pr(t0+2)}")
        rnd2(dst[i], dst[i + 1], tmp)

def gen_lnx(K, first):
    a.begin(K)
    E = f"L_{K}_end"
    def pr(x): return f"v[{x}:{x+1}]"
    a("s_cmp_ge_u32 s2, 256")
    a(f"s_cbranch_scc1 {E}")
    a(f"s_load_dwordx2 s[4:5], s[0:1], {KA['ws']}")
    a(f"s_load_dwordx2 s[6:7], s[0:1], {KA['A_q']}")
    a("s_and_b32 s3, s2, 7")
    a("s_lshl_b32 s3, s3, 5")
    a("s_lshr_b32 s2, s2, 3")
    a("s_add_u32 s2, s2, s3")
    a("v_and_b32 v1, 63, v0")
    a("v_lshrrev_b32 v2, 6, v0")
    a("s_lshl_b32 s3, s2, 3")
    a("s_lshl_b32 s24, s2, 4")
    a(f"v_mul_u32_u24 v3, {L.TS}, v0")
    a(f"v_add_u32 v4, {512*L.TS}, v3")
    a("v_add_u32 v5, s3, v2")
    a("v_mul_u32_u24 v8, 1280, v5")
    a("v_lshl_add_u32 v6, v1, 4, v8")
    a("v_lshl_add_u32 v8, v1, 2, v8")
    a("s_waitcnt lgkmcnt(0)")
    if first:
        a.srd(8, 6, 7, 2048 * 640 * 2)
    else:
        a.srd(8, 4, 5, 2048 * 640 * 2, L.X2)
    a.srd(12, 4, 5, 640 * L.TS, L.YT)
    a("buffer_load_dwordx4 v[40:43], v3, s[12:15], s24 offen")
    a("buffer_load_dwordx4 v[44:47], v4, s[12:15], s24 offen")
    a("buffer_load_dwordx4 v[48:51], v6, s[8:11], 0 offen")
    a("buffer_load_dword v52, v8, s[8:11], 0 offen offset:1024")
    NPF = 8 if os.environ.get("PF") else 0
    if NPF:
        a.srd(16, 4, 5, 640 * 1536 * 2, L.WINB)
        a("s_and_b32 s25, s2, 31")
        a("s_mul_i32 s25, s25, 61440")
        a("v_lshlrev_b32 v7, 4, v0")
        for q in range(NPF):
            a(f"buffer_load_dwordx4 v[{140+4*q}:{143+4*q}], v7, s[16:19], s25 offen")
            a("s_add_u32 s25, s25, 8192")
    a.srd(16, 4, 5, 2048 * 640 * 2, L.X1)
    a.srd(20, 4, 5, 2048 * 640 * 2, L.XNB)
    a("v_lshrrev_b32 v7, 3, v0")
    a("v_lshlrev_b32 v7, 2, v7")
    a("v_lshl_add_u32 v7, v0, 4, v7")
    a(f"s_waitcnt vmcnt({2+NPF})")
    a("ds_write2_b32 v7, v40, v41 offset0:0 offset1:1")
    a("ds_write2_b32 v7, v42, v43 offset0:2 offset1:3")
    a("v_cmp_gt_u32 vcc, 128, v0")
    a("s_and_saveexec_b64 s[30:31], vcc")
    a(f"v_add_u32 v9, {512*16 + 64*4}, v7")
    a("ds_write2_b32 v9, v44, v45 offset0:0 offset1:1")
    a("ds_write2_b32 v9, v46, v47 offset0:2 offset1:3")
    a("s_mov_b64 exec, s[30:31]")
    a("v_mul_u32_u24 v7, 132, v1")
    a("v_lshl_add_u32 v7, v2, 1, v7")
    a("v_lshrrev_b32 v9, 2, v1")
    a("v_lshlrev_b32 v9, 2, v9")
    a("v_lshl_add_u32 v9, v1, 5, v9")
    a("v_lshl_add_u32 v9, v2, 1, v9")
    a(f"s_waitcnt vmcnt({NPF}) lgkmcnt(0)")
    a("s_barrier")
    Y = list(range(80, 90))
    for i in range(8):
        a(f"ds_read_u16_d16_hi v{Y[i]}, v7 offset:{i*16}")
    for i in range(2):
        a(f"ds_read_u16_d16_hi v{Y[8+i]}, v9 offset:{512*16 + 64*4 + i*16}")
    X = list(range(60, 70))
    for i in range(5):
        unpack(X[2 * i], X[2 * i + 1], 48 + i)
    ln_stats(X, 640, 10, 42, 43)
    Q = list(range(100, 110))
    ln_apply(X, Q, 10, 16)
    a("s_waitcnt lgkmcnt(0)")
    for i in range(10):
        a(f"v_and_b32 v{Y[i]}, 0xffff0000, v{Y[i]}")
    for i in range(0, 10, 2):
        a(f"v_pk_mul_f32 {pr(Q[i])}, {pr(Q[i])}, {pr(Y[i])}")
        rnd2(Q[i], Q[i + 1], 16)
        a(f"v_pk_add_f32 {pr(X[i])}, {pr(X[i])}, {pr(Q[i])}")
        a(f"v_cvt_pk_bf16_f32 v{120+i//2}, v{X[i]}, v{X[i+1]}")
        unpack(X[i], X[i + 1], 120 + i // 2)
    a("buffer_store_dwordx4 v[120:123], v6, s[16:19], 0 offen")
    a("buffer_store_dword v124, v8, s[16:19], 0 offen offset:1024")
    ln_stats(X, 640, 10, 42, 43)
    ln_apply(X, Q, 10, 16)
    for i in range(0, 10, 2):
        a(f"v_cvt_pk_bf16_f32 v{128+i//2}, v{Q[i]}, v{Q[i+1]}")
    a("v_lshlrev_b32 v7, 15, v1")
    a("v_lshl_add_u32 v7, v5, 4, v7")
    a("buffer_store_dwordx4 v[128:131], v7, s[20:23], 0 offen")
    a("v_lshrrev_b32 v7, 2, v1")
    a("v_lshlrev_b32 v7, 15, v7")
    a("v_lshl_add_u32 v7, v5, 4, v7")
    a("v_and_b32 v9, 3, v1")
    a("v_lshl_add_u32 v7, v9, 2, v7")
    a("v_add_u32 v7, 0x200000, v7")
    a("buffer_store_dword v132, v7, s[20:23], 0 offen")
    a.label(E)
    a.end(K, 176)
    a.launch(K, 256, 512, 640 * 16 + 80 * 4)

def gen_lnz(K):
    a.begin(K)
    E = f"L_{K}_end"
    a("s_cmp_ge_u32 s2, 256")
    a(f"s_cbranch_scc1 {E}")
    a(f"s_load_dwordx2 s[4:5], s[0:1], {KA['ws']}")
    a("s_and_b32 s3, s2, 7")
    a("s_lshl_b32 s3, s3, 5")
    a("s_lshr_b32 s2, s2, 3")
    a("s_add_u32 s2, s2, s3")
    a("v_and_b32 v1, 63, v0")
    a("v_lshrrev_b32 v2, 6, v0")
    a("s_lshl_b32 s3, s2, 3")
    a("v_add_u32 v5, s3, v2")
    a("v_mul_u32_u24 v8, 1536, v5")
    a("v_lshl_add_u32 v6, v1, 4, v8")
    a("v_lshl_add_u32 v8, v1, 3, v8")
    a("s_waitcnt lgkmcnt(0)")
    a.srd(8, 4, 5, 2048 * 768 * 2, L.Z2)
    a("buffer_load_dwordx4 v[48:51], v6, s[8:11], 0 offen")
    a("buffer_load_dwordx2 v[52:53], v8, s[8:11], 0 offen offset:1024")
    a.srd(12, 4, 5, 2048 * 768 * 2, L.Z2NB)
    a("v_mul_u32_u24 v7, 132, v1")
    a("v_lshl_add_u32 v7, v2, 1, v7")
    a("v_lshrrev_b32 v9, 1, v1")
    a("v_lshlrev_b32 v9, 2, v9")
    a("v_lshl_add_u32 v9, v1, 6, v9")
    a("v_lshl_add_u32 v9, v2, 1, v9")
    a("s_waitcnt vmcnt(0)")
    X = list(range(60, 72))
    for i in range(6):
        unpack(X[2 * i], X[2 * i + 1], 48 + i)
    ln_stats(X, 768, 10, 42, 43)
    Q = list(range(100, 112))
    ln_apply(X, Q, 10, 16)
    for i in range(8):
        a(f"ds_write_b16_d16_hi v7, v{Q[i]} offset:{i*16}")
    for i in range(4):
        a(f"ds_write_b16_d16_hi v9, v{Q[8+i]} offset:{64*132 + i*16}")
    a("v_lshrrev_b32 v7, 3, v0")
    a("v_lshlrev_b32 v7, 2, v7")
    a("v_lshl_add_u32 v7, v0, 4, v7")
    a("s_mul_i32 s24, s2, 12288")
    a("v_lshlrev_b32 v8, 4, v0")
    a("s_waitcnt lgkmcnt(0)")
    a("s_barrier")
    a("ds_read2_b32 v[20:21], v7 offset0:0 offset1:1")
    a("ds_read2_b32 v[22:23], v7 offset0:2 offset1:3")
    a("v_cmp_gt_u32 vcc, 256, v0")
    a("s_and_saveexec_b64 s[30:31], vcc")
    a(f"v_add_u32 v7, {64*132}, v7")
    a("ds_read2_b32 v[24:25], v7 offset0:0 offset1:1")
    a("ds_read2_b32 v[26:27], v7 offset0:2 offset1:3")
    a("s_waitcnt lgkmcnt(0)")
    a("v_add_u32 v10, 8192, v8")
    a("buffer_store_dwordx4 v[24:27], v10, s[12:15], s24 offen")
    a("s_mov_b64 exec, s[30:31]")
    a("s_waitcnt lgkmcnt(0)")
    a("buffer_store_dwordx4 v[20:23], v8, s[12:15], s24 offen")
    a.label(E)
    a.end(K, 120)
    a.launch(K, 256, 512, 96 * 132)

def main():
    import gemm
    gen_prep()
    gen_conv()
    for layer in range(2):
        sfx = str(layer) if (GDIAG or layer == 0) else None
        gen_lnx(f"lnx{layer}_kernel", layer == 0)
        if sfx is not None:
            n1 = f"gemm1_{sfx}_kernel"; l1 = gemm.gen_gemm1(a, n1)
        a.launch(n1, 256, 512, l1)
        if os.environ.get("DUP") and layer == 0:
            n1b = "gemm1_dup_kernel"; gemm.gen_gemm1(a, n1b); a.launch(n1b, 256, 512, l1)
        if sfx is not None:
            nz = f"lnz{sfx}_kernel"; gen_lnz(nz)
        else:
            a.launch(nz, 256, 512, 96 * 132)
        if sfx is not None:
            n2 = f"gemm2_{sfx}_kernel"; l2 = gemm.gen_gemm2(a, n2)
        a.launch(n2, 256, 512, l2)
        if os.environ.get("DUP") and layer == 0:
            n2b = "gemm2_dup_kernel"; gemm.gen_gemm2(a, n2b); a.launch(n2b, 256, 512, l2)
        n3 = f"gemm3_{layer}_kernel"; l3 = gemm.gen_gemm3(a, n3, layer == 1); a.launch(n3, 256, 512, l3)
        if os.environ.get("DUP") and layer == 0:
            n3b = "gemm3_dup_kernel"; gemm.gen_gemm3(a, n3b, False); a.launch(n3b, 256, 512, l3)
    open(sys.argv[1] if len(sys.argv) > 1 else f"cdna_kernels/{NAME}.s", "w").write(a.text())

if __name__ == "__main__":
    import gen
    gen.main()
```

```python
import sys
import layout as L
import os
GDIAG = bool(os.environ.get('GDIAG'))

NAME = "interleave_layers__ssm_conv_h3__mixer_gmlp__prompt"
KA = dict(A_q=0, A_k=8, A_v=16, shift_k=24, ssm_k=32, ssm_D=40, B_x=48, w_in=56, w_sp=64, b_sp=72, w_out=80,
          out=88, dbg=96, ws=104)

class Asm:
    def __init__(self):
        self.lines = []
        self.kernels = []
        self.launches = []
        self.uid = 0
    def __call__(self, s):
        for ln in s.strip("\n").split("\n"):
            ln = ln.strip()
            if ln:
                self.lines.append("    " + ln)
    def label(self, l):
        self.lines.append(l + ":")
    def newlabel(self, base):
        self.uid += 1
        return f"L_{base}_{self.uid}"
    def begin(self, label):
        self.lines += [f".globl {label}", ".p2align 8", f".type {label},@function", f"{label}:"]
        if GDIAG:
            self("s_memrealtime s[96:97]")
            self("s_mov_b32 s95, s2")
    def end(self, label, vgpr, sgpr=102):
        if GDIAG:
            idx = len(self.kernels)
            self("s_mov_b64 exec, -1")
            self("s_waitcnt vmcnt(0) lgkmcnt(0)")
            self("s_memrealtime s[98:99]")
            self("s_load_dwordx2 s[88:89], s[0:1], 104")
            self("s_waitcnt lgkmcnt(0)")
            self(f"s_add_u32 s88, s88, {(80 << 20) + idx * (1 << 20)}")
            self("s_addc_u32 s89, s89, 0")
            self(f"s_mov_b32 s90, {1 << 20}")
            self("s_mov_b32 s91, 0x00020000")
            self("s_lshl_b32 s95, s95, 8")
            self("v_lshrrev_b32 v1, 6, v0")
            self("v_lshlrev_b32 v1, 4, v1")
            self("v_add_u32 v1, s95, v1")
            self("v_and_b32 v2, 63, v0")
            self("v_cmp_eq_u32 vcc, 0, v2")
            self("s_and_saveexec_b64 s[92:93], vcc")
            self("v_mov_b32 v4, s96"); self("v_mov_b32 v5, s97"); self("v_mov_b32 v6, s98"); self("v_mov_b32 v7, s99")
            self("buffer_store_dwordx4 v[4:7], v1, s[88:91], 0 offen")
            vgpr = max(vgpr, 8)
        self.lines.append("    s_endpgm")
        self.kernels.append((label, vgpr, sgpr))
    def launch(self, label, grid, block, lds):
        self.launches.append((label, grid, block, lds))
    def srd(self, d, base_lo, base_hi, nbytes, add=0):
        if add:
            self(f"s_add_u32 s{d}, s{base_lo}, {add}")
            self(f"s_addc_u32 s{d+1}, s{base_hi}, 0")
        else:
            self(f"s_mov_b32 s{d}, s{base_lo}")
            self(f"s_mov_b32 s{d+1}, s{base_hi}")
        self(f"s_mov_b32 s{d+2}, {nbytes}")
        self(f"s_mov_b32 s{d+3}, 0x00020000")
    def text(self):
        hdr = open(f"cdna_kernels/{NAME}.s.ref").read().split("; Override launch geometry")[0]
        out = [hdr.rstrip("\n")]
        for (label, g, b, lds) in self.launches:
            out.append(f"; @launch kernel={label} grid=({g},1,1) block=({b},1,1) lds={lds}")
        out.append('.amdgcn_target "amdgcn-amd-amdhsa--gfx950"')
        out.append(".text")
        out += self.lines
        out.append('.section .rodata,"a"')
        for (label, vgpr, sgpr) in self.kernels:
            acc = (vgpr + 3) // 4 * 4
            out += [".p2align 6", f".amdhsa_kernel {label}",
                    f"  .amdhsa_next_free_vgpr {vgpr}", f"  .amdhsa_next_free_sgpr {sgpr}",
                    f"  .amdhsa_accum_offset {acc}", "  .amdhsa_group_segment_fixed_size 0",
                    "  .amdhsa_kernarg_size 112", "  .amdhsa_user_sgpr_count 2",
                    "  .amdhsa_user_sgpr_kernarg_segment_ptr 1", "  .amdhsa_system_sgpr_workgroup_id_x 1",
                    ".end_amdhsa_kernel"]
        return "\n".join(out) + "\n"

a = Asm()

def unpack(dst_lo, dst_hi, src):
    a(f"v_lshlrev_b32 v{dst_lo}, 16, v{src}")
    a(f"v_and_b32 v{dst_hi}, 0xffff0000, v{src}")

def rnd2(x0, x1, tmp):
    a(f"v_cvt_pk_bf16_f32 v{tmp}, v{x0}, v{x1}")
    unpack(x0, x1, tmp)

def gen_prep():
    K = "prep_kernel"
    a.begin(K)
    a("s_cmp_ge_u32 s2, 424")
    a("s_cbranch_scc1 L_prep_end")
    a("s_cmp_ge_u32 s2, 344")
    a("s_cbranch_scc1 L_prep_touch")
    a(f"s_load_dwordx2 s[4:5], s[0:1], {KA['ws']}")
    a("s_mov_b32 s30, 0x05040100")
    a("s_mov_b32 s31, 0x07060302")
    a("s_cmp_lt_u32 s2, 160")
    a("s_cbranch_scc0 L_prep_w")
    a(f"s_load_dwordx4 s[24:27], s[0:1], {KA['A_k']}")
    a(f"s_load_dwordx2 s[28:29], s[0:1], {KA['shift_k']}")
    a("s_mul_i32 s3, s2, 52429")
    a("s_lshr_b32 s3, s3, 18")
    a("s_mul_i32 s6, s3, 5")
    a("s_sub_u32 s6, s2, s6")
    a("s_lshl_b32 s6, s6, 6")
    a("s_lshl_b32 s3, s3, 3")
    a("v_and_b32 v1, 63, v0")
    a("v_add_u32 v1, s6, v1")
    a("v_lshrrev_b32 v2, 6, v0")
    a("v_add_u32 v2, s3, v2")
    a("v_mul_u32_u24 v3, 10240, v2")
    a("v_lshl_add_u32 v3, v1, 2, v3")
    a("v_lshlrev_b32 v4, 4, v1")
    a("s_waitcnt lgkmcnt(0)")
    a.srd(8, 24, 25, 2048 * 640 * 2)
    a.srd(12, 26, 27, 2048 * 640 * 2)
    a.srd(16, 28, 29, 640 * 4 * 2)
    a.srd(20, 4, 5, 640 * L.TS, L.URT)
    a("buffer_load_dwordx4 v[48:51], v4, s[16:19], 0 offen")
    for i in range(3):
        off = (i - 3) * 1280
        a(f"v_add_u32 v4, {off & 0xffffffff}, v3")
        a(f"buffer_load_dword v{10+i}, v4, s[8:11], 0 offen")
    a("v_add_u32 v4, 5120, v3")
    for i in range(8):
        a(f"buffer_load_dword v{13+i}, v{3 if i < 4 else 4}, s[8:11], 0 offen offset:{(i & 3) * 1280}")
    for i in range(8):
        a(f"buffer_load_dword v{30+i}, v{3 if i < 4 else 4}, s[12:15], 0 offen offset:{(i & 3) * 1280}")
    a("s_waitcnt vmcnt(8)")
    unpack(92, 94, 48); unpack(96, 98, 49); unpack(93, 95, 50); unpack(97, 99, 51)
    for i in range(11):
        unpack(52 + 2 * i, 53 + 2 * i, 10 + i)
    a("s_waitcnt vmcnt(0)")
    def pr(x): return f"v[{x}:{x+1}]"
    for i in range(8):
        a(f"v_pk_mul_f32 {pr(100)}, {pr(52+2*i)}, {pr(98)}")
        rnd2(100, 101, 104)
        for j in (2, 1, 0):
            ki = i + 3 - j
            a(f"v_pk_mul_f32 {pr(102)}, {pr(52+2*ki)}, {pr(92+2*j)}")
            rnd2(102, 103, 104)
            a(f"v_pk_add_f32 {pr(100)}, {pr(100)}, {pr(102)}")
            rnd2(100, 101, 104)
        unpack(102, 103, 30 + i)
        a(f"v_pk_mul_f32 {pr(100)}, {pr(100)}, {pr(102)}")
        a(f"v_cvt_pk_bf16_f32 v{110+i}, v100, v101")
    for m in range(4):
        a(f"v_perm_b32 v{120+m}, v{110+6-2*m}, v{110+7-2*m}, s30")
        a(f"v_perm_b32 v{124+m}, v{110+6-2*m}, v{110+7-2*m}, s31")
    a(f"v_mul_u32_u24 v4, {2*L.TS}, v1")
    a("v_lshlrev_b32 v5, 4, v2")
    a("v_sub_u32 v4, v4, v5")
    a("v_add_u32 v4, 4080, v4")
    a(f"v_add_u32 v5, {L.TS}, v4")
    a("buffer_store_dwordx4 v[120:123], v4, s[20:23], 0 offen")
    a("buffer_store_dwordx4 v[124:127], v5, s[20:23], 0 offen")
    a("s_branch L_prep_end")
    a.label("L_prep_w")
    a("s_cmp_lt_u32 s2, 280")
    a("s_cbranch_scc0 L_prep_c")
    a(f"s_load_dwordx2 s[24:25], s[0:1], {KA['w_in']}")
    a("s_sub_u32 s3, s2, 160")
    a("s_lshl_b32 s3, s3, 9")
    a("v_add_u32 v1, s3, v0")
    a("v_lshrrev_b32 v2, 8, v1")
    a("v_mul_u32_u24 v2, 21846, v2")
    a("v_lshrrev_b32 v2, 16, v2")
    a("v_mul_u32_u24 v3, 768, v2")
    a("v_sub_u32 v1, v1, v3")
    a("s_waitcnt lgkmcnt(0)")
    a.srd(8, 24, 25, 640 * 1536 * 2)
    a.srd(20, 4, 5, 640 * 1536 * 2, L.WINB)
    a("s_mov_b32 s34, 3072")
    a("s_mov_b32 s35, 1536")
    a("s_branch L_prep_wc")
    a.label("L_prep_c")
    a(f"s_load_dwordx2 s[24:25], s[0:1], {KA['w_out']}")
    a("s_sub_u32 s3, s2, 280")
    a("s_lshl_b32 s3, s3, 9")
    a("v_add_u32 v1, s3, v0")
    a("v_mul_u32_u24 v2, 52429, v1")
    a("v_lshrrev_b32 v2, 24, v2")
    a("v_mul_u32_u24 v3, 320, v2")
    a("v_sub_u32 v1, v1, v3")
    a("s_waitcnt lgkmcnt(0)")
    a.srd(8, 24, 25, 768 * 640 * 2)
    a.srd(20, 4, 5, 768 * 640 * 2, L.WOUTB)
    a("s_mov_b32 s34, 1280")
    a("s_mov_b32 s35, 640")
    a.label("L_prep_wc")
    a("v_lshlrev_b32 v3, 3, v2")
    a("v_mul_lo_u32 v3, v3, s34")
    a("v_lshl_add_u32 v3, v1, 2, v3")
    for i in range(8):
        a(f"buffer_load_dword v{10+i}, v3, s[8:11], 0 offen")
        if i < 7:
            a("v_add_u32 v3, s34, v3")
    a("v_mul_lo_u32 v4, v2, s35")
    a("v_lshl_add_u32 v4, v1, 1, v4")
    a("v_lshlrev_b32 v4, 4, v4")
    a("s_waitcnt vmcnt(0)")
    for m in range(4):
        a(f"v_perm_b32 v{20+m}, v{10+2*m+1}, v{10+2*m}, s30")
        a(f"v_perm_b32 v{24+m}, v{10+2*m+1}, v{10+2*m}, s31")
    a("buffer_store_dwordx4 v[20:23], v4, s[20:23], 0 offen")
    a("buffer_store_dwordx4 v[24:27], v4, s[20:23], 0 offen offset:16")
    a("s_branch L_prep_end")
    a.label("L_prep_touch")
    a("s_sub_u32 s3, s2, 344")
    a(f"s_mov_b32 s6, {KA['A_q']}")
    a("s_cmp_lt_u32 s3, 40")
    a("s_cbranch_scc1 L_prep_t2")
    a("s_sub_u32 s3, s3, 40")
    a(f"s_mov_b32 s6, {KA['ssm_k']}")
    a.label("L_prep_t2")
    a("s_load_dwordx2 s[8:9], s[0:1], s6")
    a("s_lshl_b32 s3, s3, 16")
    a("v_lshlrev_b32 v1, 4, v0")
    a(f"s_mov_b32 s10, {2048*640*2}")
    a("s_mov_b32 s11, 0x00020000")
    a("s_waitcnt lgkmcnt(0)")
    for q in range(8):
        a(f"buffer_load_dwordx4 v[{8+4*q}:{11+4*q}], v1, s[8:11], s3 offen")
        a("s_add_u32 s3, s3, 8192")
    a.label("L_prep_end")
    a.end(K, 128)
    a.launch(K, 424, 512, 0)

def gen_conv():
    K = "conv_kernel"
    CS = 4160
    UOFF = 8 * CS
    LDS = UOFF + 95 * 80
    a.begin(K)
    a("s_cmp_ge_u32 s2, 640")
    a("s_cbranch_scc1 L_conv_end")
    a(f"s_load_dwordx4 s[24:27], s[0:1], {KA['ssm_k']}")
    a(f"s_load_dwordx2 s[4:5], s[0:1], {KA['ws']}")
    a(f"s_load_dwordx2 s[36:37], s[0:1], {KA['w_sp']}")
    a("s_lshl_b32 s3, s2, 12")
    a("s_waitcnt lgkmcnt(0)")
    a("s_add_u32 s24, s24, s3")
    a("s_addc_u32 s25, s25, 0")
    a.srd(8, 24, 25, 4096)
    a(f"s_mul_i32 s3, s2, {L.TS}")
    a("s_add_u32 s4, s4, s3")
    a("s_addc_u32 s5, s5, 0")
    a.srd(12, 4, 5, 4096, L.URT)
    a.srd(16, 4, 5, 4096, L.YT)
    a("s_and_b32 s6, s2, 0xfffffffe")
    a("s_lshl_b32 s6, s6, 1")
    a("s_load_dword s28, s[26:27], s6")
    a("v_lshlrev_b32 v2, 4, v0")
    a("buffer_load_dwordx4 v[48:51], v2, s[12:15], 0 offen")
    a("v_subrev_u32 v3, 80, v2")
    a("v_subrev_u32 v4, 64, v2")
    a("buffer_load_dwordx4 v[16:19], v3, s[8:11], 0 offen")
    a("buffer_load_dwordx4 v[20:23], v4, s[8:11], 0 offen")
    a("v_add_u32 v7, 4016, v2")
    a("buffer_load_dwordx4 v[56:59], v7, s[8:11], 0 offen")
    a("buffer_load_dwordx4 v[60:63], v7, s[8:11], 0 offen offset:16")
    a(f"s_mov_b32 s38, {2048*2048*2}")
    a("s_mov_b32 s39, 0x00020000")
    a("s_lshl_b32 s3, s2, 14")
    for q in range(4):
        a(f"buffer_load_dwordx4 v[{96+4*q}:{99+4*q}], v2, s[36:39], s3 offen")
        a("s_add_u32 s3, s3, 4096")
    def hfill(addr, B):
        for i in range(6):
            a(f"v_mov_b32 v{24+i}, v{B+1+i}")
        for i in range(7):
            a(f"v_alignbit_b32 v{30+i}, v{B+1+i}, v{B+i}, 16")
        for i in range(6):
            a(f"v_alignbit_b32 v{38+i}, v{B+2+i}, v{B+1+i}, 16")
        src = {0: 30, 2: 38, 4: 32, 6: 40, 1: 24, 3: B + 2, 5: 26, 7: B + 4}
        for j in range(8):
            a(f"ds_write_b128 v{addr}, v[{src[j]}:{src[j]+3}] offset:{j*CS}")
    a("v_lshrrev_b32 v5, 2, v0")
    a("v_mul_u32_u24 v5, 80, v5")
    a("v_and_b32 v6, 3, v0")
    a("v_lshl_add_u32 v5, v6, 4, v5")
    a("v_mov_b32 v52, 0"); a("v_mov_b32 v53, 0"); a("v_mov_b32 v54, 0"); a("v_mov_b32 v55, 0")
    a("v_cmp_gt_u32 vcc, 124, v0")
    a("s_and_saveexec_b64 s[30:31], vcc")
    a(f"ds_write_b128 v5, v[52:55] offset:{UOFF + 64*80}")
    a("s_mov_b64 exec, s[30:31]")
    a("s_waitcnt vmcnt(8)")
    a(f"ds_write_b128 v5, v[48:51] offset:{UOFF}")
    a("s_waitcnt vmcnt(6)")
    hfill(2, 16)
    a("v_add_u32 v7, 4096, v2")
    a("s_waitcnt vmcnt(4)")
    a("v_cmp_gt_u32 vcc, 4, v0")
    a("s_and_saveexec_b64 s[30:31], vcc")
    hfill(7, 56)
    a("s_mov_b64 exec, s[30:31]")
    a("v_and_b32 v1, 31, v0")
    a("v_bfe_u32 v2, v0, 5, 1")
    a("v_lshrrev_b32 v3, 6, v0")
    a("v_and_b32 v4, 7, v1")
    a(f"v_mul_u32_u24 v4, {CS}, v4")
    a("v_lshrrev_b32 v5, 3, v1")
    a("v_add_u32 v5, v5, v2")
    a("v_lshl_add_u32 v4, v5, 4, v4")
    a("v_lshl_add_u32 v4, v3, 9, v4")
    a("v_add_u32 v4, 16, v4")
    a("v_sub_u32 v5, 31, v1")
    a("v_mul_u32_u24 v5, 80, v5")
    a("v_lshl_add_u32 v5, v2, 4, v5")
    a("v_mul_u32_u24 v6, 640, v3")
    a("v_add_u32 v5, v5, v6")
    a(f"v_add_u32 v5, {UOFF}, v5")
    for i in range(32):
        a(f"v_mov_b32 v{64+i}, 0")
    a("s_waitcnt lgkmcnt(0)")
    a("s_barrier")
    steps = [(dl, c0) for dl in range(8) for c0 in (0, 16)]
    def reads(k, base):
        dl, c0 = steps[k]
        oa = 64 * dl + (32 if c0 == 0 else 0)
        ob = 80 * dl + (32 if c0 == 0 else 0)
        a(f"ds_read_b128 v[{base}:{base+3}], v4 offset:{oa}")
        a(f"ds_read_b128 v[{base+4}:{base+7}], v5 offset:{ob+2560}")
        a(f"ds_read_b128 v[{base+8}:{base+11}], v5 offset:{ob}")
        a(f"ds_read_b128 v[{base+12}:{base+15}], v4 offset:{oa+2048}")
    reads(0, 16)
    for k in range(16):
        base = 16 + 16 * (k & 1)
        if k + 1 < 16:
            reads(k + 1, 16 + 16 * ((k + 1) & 1))
            a("s_waitcnt lgkmcnt(4)")
        else:
            a("s_waitcnt lgkmcnt(0)")
        a(f"v_mfma_f32_32x32x16_bf16 v[64:79], v[{base}:{base+3}], v[{base+4}:{base+7}], v[64:79]")
        a(f"v_mfma_f32_32x32x16_bf16 v[80:95], v[{base}:{base+3}], v[{base+8}:{base+11}], v[80:95]")
        a(f"v_mfma_f32_32x32x16_bf16 v[80:95], v[{base+12}:{base+15}], v[{base+4}:{base+7}], v[80:95]")
    a("s_nop 15")
    a("s_barrier")
    a("v_and_b32 v6, 63, v0")
    a("v_lshlrev_b32 v6, 4, v6")
    a("v_lshl_add_u32 v7, v3, 13, v6")
    for q in range(8):
        a(f"ds_write_b128 v7, v[{64+4*q}:{67+4*q}] offset:{q*1024}")
    a("v_lshl_add_u32 v8, v3, 11, v6")
    a("s_waitcnt lgkmcnt(0)")
    a("s_barrier")
    for ww in range(4):
        for qq in range(2):
            r = 16 + (ww * 2 + qq) * 4
            a(f"ds_read_b128 v[{r}:{r+3}], v8 offset:{ww*8192 + qq*1024}")
    a("v_lshrrev_b32 v9, 1, v3")
    a("v_lshlrev_b32 v9, 10, v9")
    a("v_lshl_add_u32 v9, v1, 5, v9")
    a("v_and_b32 v10, 1, v3")
    a("v_lshl_add_u32 v9, v10, 4, v9")
    a("v_lshl_add_u32 v9, v2, 2, v9")
    for qq in range(2):
        a(f"v_sub_u32 v10, {2044 - 8*qq}, v9")
        a("v_lshrrev_b32 v11, 5, v10")
        a("v_mul_u32_u24 v11, 80, v11")
        a("v_and_b32 v10, 31, v10")
        a("v_lshl_add_u32 v11, v10, 1, v11")
        a(f"ds_read_b64 v[{48+2*qq}:{49+2*qq}], v11 offset:{UOFF}")
    a("s_and_b32 s6, s2, 1")
    a("s_cmp_eq_u32 s6, 1")
    a("s_cbranch_scc1 L_conv_odd")
    a("s_lshl_b32 s28, s28, 16")
    a.label("L_conv_odd")
    a("s_and_b32 s28, s28, 0xffff0000")
    a("s_waitcnt lgkmcnt(0)")
    for qq in range(2):
        for i in range(4):
            r = 16 + qq * 4 + i
            for ww in range(1, 4):
                a(f"v_add_f32 v{r}, v{r}, v{16 + (ww*2+qq)*4 + i}")
    for qq in range(2):
        r = 16 + qq * 4
        rnd2(r, r + 1, 60); rnd2(r + 2, r + 3, 60)
        unpack(55, 54, 48 + 2 * qq)
        unpack(53, 52, 49 + 2 * qq)
        for i in range(4):
            a(f"v_mul_f32 v{52+i}, s28, v{52+i}")
        rnd2(52, 53, 60); rnd2(54, 55, 60)
        for i in range(4):
            a(f"v_add_f32 v{r+i}, v{r+i}, v{52+i}")
        a(f"v_cvt_pk_bf16_f32 v{56+2*qq}, v{r}, v{r+1}")
        a(f"v_cvt_pk_bf16_f32 v{57+2*qq}, v{r+2}, v{r+3}")
    a("v_lshlrev_b32 v9, 1, v9")
    a("buffer_store_dwordx2 v[56:57], v9, s[16:19], 0 offen")
    a("buffer_store_dwordx2 v[58:59], v9, s[16:19], 0 offen offset:16")
    a.label("L_conv_end")
    a.end(K, 112)
    a.launch(K, 640, 256, LDS)

def wave_sum(v, sdst):
    a("s_nop 1")
    for sh in (1, 2, 4, 8):
        a(f"v_add_f32_dpp v{v}, v{v}, v{v} row_shr:{sh} row_mask:0xf bank_mask:0xf bound_ctrl:0")
        a("s_nop 1")
    a(f"v_add_f32_dpp v{v}, v{v}, v{v} row_bcast:15 row_mask:0xa bank_mask:0xf")
    a("s_nop 1")
    a(f"v_add_f32_dpp v{v}, v{v}, v{v} row_bcast:31 row_mask:0xc bank_mask:0xf")
    a("s_nop 1")
    a(f"v_readlane_b32 s{sdst}, v{v}, 63")
    a("s_nop 1")

def ln_stats(xs, N, t0, smb, srinv):
    def pr(x): return f"v[{x}:{x+1}]"
    n = len(xs)
    a(f"v_pk_add_f32 {pr(t0)}, {pr(xs[0])}, {pr(xs[2])}")
    for i in range(4, n, 2):
        a(f"v_pk_add_f32 {pr(t0)}, {pr(t0)}, {pr(xs[i])}")
    a(f"v_add_f32 v{t0}, v{t0}, v{t0+1}")
    wave_sum(t0, 40)
    a(f"v_mov_b32 v{t0}, s40")
    a(f"v_mul_f32 v{t0}, {-1.0/N!r}, v{t0}")
    a(f"v_mov_b32 v{t0+1}, v{t0}")
    for i in range(0, n, 2):
        a(f"v_pk_add_f32 {pr(t0+2)}, {pr(xs[i])}, {pr(t0)}")
        if i == 0:
            a(f"v_pk_mul_f32 {pr(t0+4)}, {pr(t0+2)}, {pr(t0+2)}")
        else:
            a(f"v_pk_fma_f32 {pr(t0+4)}, {pr(t0+2)}, {pr(t0+2)}, {pr(t0+4)}")
    a(f"v_add_f32 v{t0+2}, v{t0+4}, v{t0+5}")
    wave_sum(t0 + 2, 41)
    a(f"v_mov_b32 v{t0+1}, s41")
    a(f"v_mul_f32 v{t0+1}, {1.0/N!r}, v{t0+1}")
    rnd2(t0, t0 + 1, t0 + 2)
    a(f"v_add_f32 v{t0+1}, 0x3727c5ac, v{t0+1}")
    rnd2(t0 + 1, t0 + 1, t0 + 2)
    a(f"v_sqrt_f32 v{t0+1}, v{t0+1}")
    a("s_nop 0")
    rnd2(t0 + 1, t0 + 1, t0 + 2)
    a(f"v_rcp_f32 v{t0+2}, v{t0+1}")
    a(f"v_mov_b32 v{t0+1}, v{t0}")
    a(f"v_mov_b32 v{t0+3}, v{t0+2}")

def ln_apply(xs, dst, t0, tmp):
    def pr(x): return f"v[{x}:{x+1}]"
    for i in range(0, len(xs), 2):
        a(f"v_pk_add_f32 {pr(dst[i])}, {pr(xs[i])}, {pr(t0)}")
        rnd2(dst[i], dst[i + 1], tmp)
        a(f"v_pk_mul_f32 {pr(dst[i])}, {pr(dst[i])}, {pr(t0+2)}")
        rnd2(dst[i], dst[i + 1], tmp)

def gen_lnx(K, first):
    a.begin(K)
    E = f"L_{K}_end"
    def pr(x): return f"v[{x}:{x+1}]"
    a("s_cmp_ge_u32 s2, 256")
    a(f"s_cbranch_scc1 {E}")
    a(f"s_load_dwordx2 s[4:5], s[0:1], {KA['ws']}")
    a(f"s_load_dwordx2 s[6:7], s[0:1], {KA['A_q']}")
    a("s_and_b32 s3, s2, 7")
    a("s_lshl_b32 s3, s3, 5")
    a("s_lshr_b32 s2, s2, 3")
    a("s_add_u32 s2, s2, s3")
    a("v_and_b32 v1, 63, v0")
    a("v_lshrrev_b32 v2, 6, v0")
    a("s_lshl_b32 s3, s2, 3")
    a("s_lshl_b32 s24, s2, 4")
    a(f"v_mul_u32_u24 v3, {L.TS}, v0")
    a(f"v_add_u32 v4, {512*L.TS}, v3")
    a("v_add_u32 v5, s3, v2")
    a("v_mul_u32_u24 v8, 1280, v5")
    a("v_lshl_add_u32 v6, v1, 4, v8")
    a("v_lshl_add_u32 v8, v1, 2, v8")
    a("s_waitcnt lgkmcnt(0)")
    if first:
        a.srd(8, 6, 7, 2048 * 640 * 2)
    else:
        a.srd(8, 4, 5, 2048 * 640 * 2, L.X2)
    a.srd(12, 4, 5, 640 * L.TS, L.YT)
    a("buffer_load_dwordx4 v[40:43], v3, s[12:15], s24 offen")
    a("buffer_load_dwordx4 v[44:47], v4, s[12:15], s24 offen")
    a("buffer_load_dwordx4 v[48:51], v6, s[8:11], 0 offen")
    a("buffer_load_dword v52, v8, s[8:11], 0 offen offset:1024")
    NPF = 8 if os.environ.get("PF") else 0
    if NPF:
        a.srd(16, 4, 5, 640 * 1536 * 2, L.WINB)
        a("s_and_b32 s25, s2, 31")
        a("s_mul_i32 s25, s25, 61440")
        a("v_lshlrev_b32 v7, 4, v0")
        for q in range(NPF):
            a(f"buffer_load_dwordx4 v[{140+4*q}:{143+4*q}], v7, s[16:19], s25 offen")
            a("s_add_u32 s25, s25, 8192")
    a.srd(16, 4, 5, 2048 * 640 * 2, L.X1)
    a.srd(20, 4, 5, 2048 * 640 * 2, L.XNB)
    a("v_lshrrev_b32 v7, 3, v0")
    a("v_lshlrev_b32 v7, 2, v7")
    a("v_lshl_add_u32 v7, v0, 4, v7")
    a(f"s_waitcnt vmcnt({2+NPF})")
    a("ds_write2_b32 v7, v40, v41 offset0:0 offset1:1")
    a("ds_write2_b32 v7, v42, v43 offset0:2 offset1:3")
    a("v_cmp_gt_u32 vcc, 128, v0")
    a("s_and_saveexec_b64 s[30:31], vcc")
    a(f"v_add_u32 v9, {512*16 + 64*4}, v7")
    a("ds_write2_b32 v9, v44, v45 offset0:0 offset1:1")
    a("ds_write2_b32 v9, v46, v47 offset0:2 offset1:3")
    a("s_mov_b64 exec, s[30:31]")
    a("v_mul_u32_u24 v7, 132, v1")
    a("v_lshl_add_u32 v7, v2, 1, v7")
    a("v_lshrrev_b32 v9, 2, v1")
    a("v_lshlrev_b32 v9, 2, v9")
    a("v_lshl_add_u32 v9, v1, 5, v9")
    a("v_lshl_add_u32 v9, v2, 1, v9")
    a(f"s_waitcnt vmcnt({NPF}) lgkmcnt(0)")
    a("s_barrier")
    Y = list(range(80, 90))
    for i in range(8):
        a(f"ds_read_u16_d16_hi v{Y[i]}, v7 offset:{i*16}")
    for i in range(2):
        a(f"ds_read_u16_d16_hi v{Y[8+i]}, v9 offset:{512*16 + 64*4 + i*16}")
    X = list(range(60, 70))
    for i in range(5):
        unpack(X[2 * i], X[2 * i + 1], 48 + i)
    ln_stats(X, 640, 10, 42, 43)
    Q = list(range(100, 110))
    ln_apply(X, Q, 10, 16)
    a("s_waitcnt lgkmcnt(0)")
    for i in range(10):
        a(f"v_and_b32 v{Y[i]}, 0xffff0000, v{Y[i]}")
    for i in range(0, 10, 2):
        a(f"v_pk_mul_f32 {pr(Q[i])}, {pr(Q[i])}, {pr(Y[i])}")
        rnd2(Q[i], Q[i + 1], 16)
        a(f"v_pk_add_f32 {pr(X[i])}, {pr(X[i])}, {pr(Q[i])}")
        a(f"v_cvt_pk_bf16_f32 v{120+i//2}, v{X[i]}, v{X[i+1]}")
        unpack(X[i], X[i + 1], 120 + i // 2)
    a("buffer_store_dwordx4 v[120:123], v6, s[16:19], 0 offen")
    a("buffer_store_dword v124, v8, s[16:19], 0 offen offset:1024")
    ln_stats(X, 640, 10, 42, 43)
    ln_apply(X, Q, 10, 16)
    for i in range(0, 10, 2):
        a(f"v_cvt_pk_bf16_f32 v{128+i//2}, v{Q[i]}, v{Q[i+1]}")
    a("v_lshlrev_b32 v7, 15, v1")
    a("v_lshl_add_u32 v7, v5, 4, v7")
    a("buffer_store_dwordx4 v[128:131], v7, s[20:23], 0 offen")
    a("v_lshrrev_b32 v7, 2, v1")
    a("v_lshlrev_b32 v7, 15, v7")
    a("v_lshl_add_u32 v7, v5, 4, v7")
    a("v_and_b32 v9, 3, v1")
    a("v_lshl_add_u32 v7, v9, 2, v7")
    a("v_add_u32 v7, 0x200000, v7")
    a("buffer_store_dword v132, v7, s[20:23], 0 offen")
    a.label(E)
    a.end(K, 176)
    a.launch(K, 256, 512, 640 * 16 + 80 * 4)

def gen_lnz(K):
    a.begin(K)
    E = f"L_{K}_end"
    a("s_cmp_ge_u32 s2, 256")
    a(f"s_cbranch_scc1 {E}")
    a(f"s_load_dwordx2 s[4:5], s[0:1], {KA['ws']}")
    a("s_and_b32 s3, s2, 7")
    a("s_lshl_b32 s3, s3, 5")
    a("s_lshr_b32 s2, s2, 3")
    a("s_add_u32 s2, s2, s3")
    a("v_and_b32 v1, 63, v0")
    a("v_lshrrev_b32 v2, 6, v0")
    a("s_lshl_b32 s3, s2, 3")
    a("v_add_u32 v5, s3, v2")
    a("v_mul_u32_u24 v8, 1536, v5")
    a("v_lshl_add_u32 v6, v1, 4, v8")
    a("v_lshl_add_u32 v8, v1, 3, v8")
    a("s_waitcnt lgkmcnt(0)")
    a.srd(8, 4, 5, 2048 * 768 * 2, L.Z2)
    a("buffer_load_dwordx4 v[48:51], v6, s[8:11], 0 offen")
    a("buffer_load_dwordx2 v[52:53], v8, s[8:11], 0 offen offset:1024")
    a.srd(12, 4, 5, 2048 * 768 * 2, L.Z2NB)
    a("v_mul_u32_u24 v7, 132, v1")
    a("v_lshl_add_u32 v7, v2, 1, v7")
    a("v_lshrrev_b32 v9, 1, v1")
    a("v_lshlrev_b32 v9, 2, v9")
    a("v_lshl_add_u32 v9, v1, 6, v9")
    a("v_lshl_add_u32 v9, v2, 1, v9")
    a("s_waitcnt vmcnt(0)")
    X = list(range(60, 72))
    for i in range(6):
        unpack(X[2 * i], X[2 * i + 1], 48 + i)
    ln_stats(X, 768, 10, 42, 43)
    Q = list(range(100, 112))
    ln_apply(X, Q, 10, 16)
    for i in range(8):
        a(f"ds_write_b16_d16_hi v7, v{Q[i]} offset:{i*16}")
    for i in range(4):
        a(f"ds_write_b16_d16_hi v9, v{Q[8+i]} offset:{64*132 + i*16}")
    a("v_lshrrev_b32 v7, 3, v0")
    a("v_lshlrev_b32 v7, 2, v7")
    a("v_lshl_add_u32 v7, v0, 4, v7")
    a("s_mul_i32 s24, s2, 12288")
    a("v_lshlrev_b32 v8, 4, v0")
    a("s_waitcnt lgkmcnt(0)")
    a("s_barrier")
    a("ds_read2_b32 v[20:21], v7 offset0:0 offset1:1")
    a("ds_read2_b32 v[22:23], v7 offset0:2 offset1:3")
    a("v_cmp_gt_u32 vcc, 256, v0")
    a("s_and_saveexec_b64 s[30:31], vcc")
    a(f"v_add_u32 v7, {64*132}, v7")
    a("ds_read2_b32 v[24:25], v7 offset0:0 offset1:1")
    a("ds_read2_b32 v[26:27], v7 offset0:2 offset1:3")
    a("s_waitcnt lgkmcnt(0)")
    a("v_add_u32 v10, 8192, v8")
    a("buffer_store_dwordx4 v[24:27], v10, s[12:15], s24 offen")
    a("s_mov_b64 exec, s[30:31]")
    a("s_waitcnt lgkmcnt(0)")
    a("buffer_store_dwordx4 v[20:23], v8, s[12:15], s24 offen")
    a.label(E)
    a.end(K, 120)
    a.launch(K, 256, 512, 96 * 132)

def main():
    import gemm
    gen_prep()
    gen_conv()
    for layer in range(2):
        sfx = str(layer) if (GDIAG or layer == 0) else None
        gen_lnx(f"lnx{layer}_kernel", layer == 0)
        if sfx is not None:
            n1 = f"gemm1_{sfx}_kernel"; l1 = gemm.gen_gemm1(a, n1)
        a.launch(n1, 256, 512, l1)
        if os.environ.get("DUP") and layer == 0:
            n1b = "gemm1_dup_kernel"; gemm.gen_gemm1(a, n1b); a.launch(n1b, 256, 512, l1)
        if sfx is not None:
            nz = f"lnz{sfx}_kernel"; gen_lnz(nz)
        else:
            a.launch(nz, 256, 512, 96 * 132)
        if sfx is not None:
            n2 = f"gemm2_{sfx}_kernel"; l2 = gemm.gen_gemm2(a, n2)
        a.launch(n2, 256, 512, l2)
        if os.environ.get("DUP") and layer == 0:
            n2b = "gemm2_dup_kernel"; gemm.gen_gemm2(a, n2b); a.launch(n2b, 256, 512, l2)
        n3 = f"gemm3_{layer}_kernel"; l3 = gemm.gen_gemm3(a, n3, layer == 1); a.launch(n3, 256, 512, l3)
        if os.environ.get("DUP") and layer == 0:
            n3b = "gemm3_dup_kernel"; gemm.gen_gemm3(a, n3b, False); a.launch(n3b, 256, 512, l3)
    if os.environ.get("DUMMY"):
        a.begin("nop_kernel"); a.end("nop_kernel", 8)
        for _ in range(int(os.environ["DUMMY"])):
            a.launch("nop_kernel", 8, 64, 0)
    open(sys.argv[1] if len(sys.argv) > 1 else f"cdna_kernels/{NAME}.s", "w").write(a.text())

if __name__ == "__main__":
    import gen
    gen.main()
```

```python
import sys
import layout as L
import os
GDIAG = bool(os.environ.get('GDIAG'))

NAME = "interleave_layers__ssm_conv_h3__mixer_gmlp__prompt"
KA = dict(A_q=0, A_k=8, A_v=16, shift_k=24, ssm_k=32, ssm_D=40, B_x=48, w_in=56, w_sp=64, b_sp=72, w_out=80,
          out=88, dbg=96, ws=104)

class Asm:
    def __init__(self):
        self.lines = []
        self.kernels = []
        self.launches = []
        self.uid = 0
    def __call__(self, s):
        for ln in s.strip("\n").split("\n"):
            ln = ln.strip()
            if ln:
                self.lines.append("    " + ln)
    def label(self, l):
        self.lines.append(l + ":")
    def newlabel(self, base):
        self.uid += 1
        return f"L_{base}_{self.uid}"
    def begin(self, label):
        self.lines += [f".globl {label}", ".p2align 8", f".type {label},@function", f"{label}:"]
        if GDIAG:
            self("s_memrealtime s[96:97]")
            self("s_mov_b32 s95, s2")
    def end(self, label, vgpr, sgpr=102):
        if GDIAG:
            idx = len(self.kernels)
            self("s_mov_b64 exec, -1")
            self("s_waitcnt vmcnt(0) lgkmcnt(0)")
            self("s_memrealtime s[98:99]")
            self("s_load_dwordx2 s[88:89], s[0:1], 104")
            self("s_waitcnt lgkmcnt(0)")
            self(f"s_add_u32 s88, s88, {(80 << 20) + idx * (1 << 20)}")
            self("s_addc_u32 s89, s89, 0")
            self(f"s_mov_b32 s90, {1 << 20}")
            self("s_mov_b32 s91, 0x00020000")
            self("s_lshl_b32 s95, s95, 8")
            self("v_lshrrev_b32 v1, 6, v0")
            self("v_lshlrev_b32 v1, 4, v1")
            self("v_add_u32 v1, s95, v1")
            self("v_and_b32 v2, 63, v0")
            self("v_cmp_eq_u32 vcc, 0, v2")
            self("s_and_saveexec_b64 s[92:93], vcc")
            self("v_mov_b32 v4, s96"); self("v_mov_b32 v5, s97"); self("v_mov_b32 v6, s98"); self("v_mov_b32 v7, s99")
            self("buffer_store_dwordx4 v[4:7], v1, s[88:91], 0 offen")
            vgpr = max(vgpr, 8)
        self.lines.append("    s_endpgm")
        self.kernels.append((label, vgpr, sgpr))
    def launch(self, label, grid, block, lds):
        self.launches.append((label, grid, block, lds))
    def srd(self, d, base_lo, base_hi, nbytes, add=0):
        if add:
            self(f"s_add_u32 s{d}, s{base_lo}, {add}")
            self(f"s_addc_u32 s{d+1}, s{base_hi}, 0")
        else:
            self(f"s_mov_b32 s{d}, s{base_lo}")
            self(f"s_mov_b32 s{d+1}, s{base_hi}")
        self(f"s_mov_b32 s{d+2}, {nbytes}")
        self(f"s_mov_b32 s{d+3}, 0x00020000")
    def text(self):
        hdr = open(f"cdna_kernels/{NAME}.s.ref").read().split("; Override launch geometry")[0]
        out = [hdr.rstrip("\n")]
        for (label, g, b, lds) in self.launches:
            out.append(f"; @launch kernel={label} grid=({g},1,1) block=({b},1,1) lds={lds}")
        out.append('.amdgcn_target "amdgcn-amd-amdhsa--gfx950"')
        out.append(".text")
        out += self.lines
        out.append("L_text_end:")
        out.append('.section .rodata,"a"')
        for (label, vgpr, sgpr) in self.kernels:
            acc = (vgpr + 3) // 4 * 4
            out += [".p2align 6", f".amdhsa_kernel {label}",
                    f"  .amdhsa_next_free_vgpr {vgpr}", f"  .amdhsa_next_free_sgpr {sgpr}",
                    f"  .amdhsa_accum_offset {acc}", "  .amdhsa_group_segment_fixed_size 0",
                    "  .amdhsa_kernarg_size 112", "  .amdhsa_user_sgpr_count 2",
                    "  .amdhsa_user_sgpr_kernarg_segment_ptr 1", "  .amdhsa_system_sgpr_workgroup_id_x 1",
                    ".end_amdhsa_kernel"]
        return "\n".join(out) + "\n"

a = Asm()

def unpack(dst_lo, dst_hi, src):
    a(f"v_lshlrev_b32 v{dst_lo}, 16, v{src}")
    a(f"v_and_b32 v{dst_hi}, 0xffff0000, v{src}")

def rnd2(x0, x1, tmp):
    a(f"v_cvt_pk_bf16_f32 v{tmp}, v{x0}, v{x1}")
    unpack(x0, x1, tmp)

def gen_prep():
    K = "prep_kernel"
    a.begin(K)
    a("s_cmp_ge_u32 s2, 424")
    a("s_cbranch_scc1 L_prep_end")
    a("s_cmp_ge_u32 s2, 344")
    a("s_cbranch_scc1 L_prep_touch")
    a(f"s_load_dwordx2 s[4:5], s[0:1], {KA['ws']}")
    a("s_mov_b32 s30, 0x05040100")
    a("s_mov_b32 s31, 0x07060302")
    a("s_cmp_lt_u32 s2, 160")
    a("s_cbranch_scc0 L_prep_w")
    a(f"s_load_dwordx4 s[24:27], s[0:1], {KA['A_k']}")
    a(f"s_load_dwordx2 s[28:29], s[0:1], {KA['shift_k']}")
    a("s_mul_i32 s3, s2, 52429")
    a("s_lshr_b32 s3, s3, 18")
    a("s_mul_i32 s6, s3, 5")
    a("s_sub_u32 s6, s2, s6")
    a("s_lshl_b32 s6, s6, 6")
    a("s_lshl_b32 s3, s3, 3")
    a("v_and_b32 v1, 63, v0")
    a("v_add_u32 v1, s6, v1")
    a("v_lshrrev_b32 v2, 6, v0")
    a("v_add_u32 v2, s3, v2")
    a("v_mul_u32_u24 v3, 10240, v2")
    a("v_lshl_add_u32 v3, v1, 2, v3")
    a("v_lshlrev_b32 v4, 4, v1")
    a("s_waitcnt lgkmcnt(0)")
    a.srd(8, 24, 25, 2048 * 640 * 2)
    a.srd(12, 26, 27, 2048 * 640 * 2)
    a.srd(16, 28, 29, 640 * 4 * 2)
    a.srd(20, 4, 5, 640 * L.TS, L.URT)
    a("buffer_load_dwordx4 v[48:51], v4, s[16:19], 0 offen")
    for i in range(3):
        off = (i - 3) * 1280
        a(f"v_add_u32 v4, {off & 0xffffffff}, v3")
        a(f"buffer_load_dword v{10+i}, v4, s[8:11], 0 offen")
    a("v_add_u32 v4, 5120, v3")
    for i in range(8):
        a(f"buffer_load_dword v{13+i}, v{3 if i < 4 else 4}, s[8:11], 0 offen offset:{(i & 3) * 1280}")
    for i in range(8):
        a(f"buffer_load_dword v{30+i}, v{3 if i < 4 else 4}, s[12:15], 0 offen offset:{(i & 3) * 1280}")
    a("s_waitcnt vmcnt(8)")
    unpack(92, 94, 48); unpack(96, 98, 49); unpack(93, 95, 50); unpack(97, 99, 51)
    for i in range(11):
        unpack(52 + 2 * i, 53 + 2 * i, 10 + i)
    a("s_waitcnt vmcnt(0)")
    def pr(x): return f"v[{x}:{x+1}]"
    for i in range(8):
        a(f"v_pk_mul_f32 {pr(100)}, {pr(52+2*i)}, {pr(98)}")
        rnd2(100, 101, 104)
        for j in (2, 1, 0):
            ki = i + 3 - j
            a(f"v_pk_mul_f32 {pr(102)}, {pr(52+2*ki)}, {pr(92+2*j)}")
            rnd2(102, 103, 104)
            a(f"v_pk_add_f32 {pr(100)}, {pr(100)}, {pr(102)}")
            rnd2(100, 101, 104)
        unpack(102, 103, 30 + i)
        a(f"v_pk_mul_f32 {pr(100)}, {pr(100)}, {pr(102)}")
        a(f"v_cvt_pk_bf16_f32 v{110+i}, v100, v101")
    for m in range(4):
        a(f"v_perm_b32 v{120+m}, v{110+6-2*m}, v{110+7-2*m}, s30")
        a(f"v_perm_b32 v{124+m}, v{110+6-2*m}, v{110+7-2*m}, s31")
    a(f"v_mul_u32_u24 v4, {2*L.TS}, v1")
    a("v_lshlrev_b32 v5, 4, v2")
    a("v_sub_u32 v4, v4, v5")
    a("v_add_u32 v4, 4080, v4")
    a(f"v_add_u32 v5, {L.TS}, v4")
    a("buffer_store_dwordx4 v[120:123], v4, s[20:23], 0 offen")
    a("buffer_store_dwordx4 v[124:127], v5, s[20:23], 0 offen")
    a("s_branch L_prep_end")
    a.label("L_prep_w")
    a("s_cmp_lt_u32 s2, 280")
    a("s_cbranch_scc0 L_prep_c")
    a(f"s_load_dwordx2 s[24:25], s[0:1], {KA['w_in']}")
    a("s_sub_u32 s3, s2, 160")
    a("s_lshl_b32 s3, s3, 9")
    a("v_add_u32 v1, s3, v0")
    a("v_lshrrev_b32 v2, 8, v1")
    a("v_mul_u32_u24 v2, 21846, v2")
    a("v_lshrrev_b32 v2, 16, v2")
    a("v_mul_u32_u24 v3, 768, v2")
    a("v_sub_u32 v1, v1, v3")
    a("s_waitcnt lgkmcnt(0)")
    a.srd(8, 24, 25, 640 * 1536 * 2)
    a.srd(20, 4, 5, 640 * 1536 * 2, L.WINB)
    a("s_mov_b32 s34, 3072")
    a("s_mov_b32 s35, 1536")
    a("s_branch L_prep_wc")
    a.label("L_prep_c")
    a(f"s_load_dwordx2 s[24:25], s[0:1], {KA['w_out']}")
    a("s_sub_u32 s3, s2, 280")
    a("s_lshl_b32 s3, s3, 9")
    a("v_add_u32 v1, s3, v0")
    a("v_mul_u32_u24 v2, 52429, v1")
    a("v_lshrrev_b32 v2, 24, v2")
    a("v_mul_u32_u24 v3, 320, v2")
    a("v_sub_u32 v1, v1, v3")
    a("s_waitcnt lgkmcnt(0)")
    a.srd(8, 24, 25, 768 * 640 * 2)
    a.srd(20, 4, 5, 768 * 640 * 2, L.WOUTB)
    a("s_mov_b32 s34, 1280")
    a("s_mov_b32 s35, 640")
    a.label("L_prep_wc")
    a("v_lshlrev_b32 v3, 3, v2")
    a("v_mul_lo_u32 v3, v3, s34")
    a("v_lshl_add_u32 v3, v1, 2, v3")
    for i in range(8):
        a(f"buffer_load_dword v{10+i}, v3, s[8:11], 0 offen")
        if i < 7:
            a("v_add_u32 v3, s34, v3")
    a("v_mul_lo_u32 v4, v2, s35")
    a("v_lshl_add_u32 v4, v1, 1, v4")
    a("v_lshlrev_b32 v4, 4, v4")
    a("s_waitcnt vmcnt(0)")
    for m in range(4):
        a(f"v_perm_b32 v{20+m}, v{10+2*m+1}, v{10+2*m}, s30")
        a(f"v_perm_b32 v{24+m}, v{10+2*m+1}, v{10+2*m}, s31")
    a("buffer_store_dwordx4 v[20:23], v4, s[20:23], 0 offen")
    a("buffer_store_dwordx4 v[24:27], v4, s[20:23], 0 offen offset:16")
    a("s_branch L_prep_end")
    a.label("L_prep_touch")
    if os.environ.get("CODEPF", "1") == "1":
        a("s_cmp_ge_u32 s2, 360")
        a("s_cbranch_scc1 L_prep_t1")
        a("s_getpc_b64 s[12:13]")
        a.label("L_prep_pc")
        a("s_add_u32 s12, s12, conv_kernel-L_prep_pc")
        a("s_addc_u32 s13, s13, 0")
        a("v_lshlrev_b32 v1, 4, v0")
        a("s_mov_b32 s14, 0")
        a.label("L_prep_cl")
        a("v_cmp_gt_u32 vcc, L_text_end-conv_kernel-16, v1")
        a("s_and_saveexec_b64 s[16:17], vcc")
        a("s_cbranch_execz L_prep_cd")
        a("global_load_dwordx4 v[48:51], v1, s[12:13]")
        a("v_add_u32 v1, 8192, v1")
        a("s_branch L_prep_cl")
        a.label("L_prep_cd")
        a("s_mov_b64 exec, -1")
        a.label("L_prep_t1")
    a("s_sub_u32 s3, s2, 344")
    a(f"s_mov_b32 s6, {KA['A_q']}")
    a("s_cmp_lt_u32 s3, 40")
    a("s_cbranch_scc1 L_prep_t2")
    a("s_sub_u32 s3, s3, 40")
    a(f"s_mov_b32 s6, {KA['ssm_k']}")
    a.label("L_prep_t2")
    a("s_load_dwordx2 s[8:9], s[0:1], s6")
    a("s_lshl_b32 s3, s3, 16")
    a("v_lshlrev_b32 v1, 4, v0")
    a(f"s_mov_b32 s10, {2048*640*2}")
    a("s_mov_b32 s11, 0x00020000")
    a("s_waitcnt lgkmcnt(0)")
    for q in range(8):
        a(f"buffer_load_dwordx4 v[{8+4*q}:{11+4*q}], v1, s[8:11], s3 offen")
        a("s_add_u32 s3, s3, 8192")
    a.label("L_prep_end")
    a.end(K, 128)
    a.launch(K, 424, 512, 0)

def gen_conv():
    K = "conv_kernel"
    CS = 4160
    UOFF = 8 * CS
    LDS = UOFF + 95 * 80
    a.begin(K)
    a("s_cmp_ge_u32 s2, 640")
    a("s_cbranch_scc1 L_conv_end")
    a(f"s_load_dwordx4 s[24:27], s[0:1], {KA['ssm_k']}")
    a(f"s_load_dwordx2 s[4:5], s[0:1], {KA['ws']}")
    a(f"s_load_dwordx2 s[36:37], s[0:1], {KA['w_sp']}")
    a("s_lshl_b32 s3, s2, 12")
    a("s_waitcnt lgkmcnt(0)")
    a("s_add_u32 s24, s24, s3")
    a("s_addc_u32 s25, s25, 0")
    a.srd(8, 24, 25, 4096)
    a(f"s_mul_i32 s3, s2, {L.TS}")
    a("s_add_u32 s4, s4, s3")
    a("s_addc_u32 s5, s5, 0")
    a.srd(12, 4, 5, 4096, L.URT)
    a.srd(16, 4, 5, 4096, L.YT)
    a("s_and_b32 s6, s2, 0xfffffffe")
    a("s_lshl_b32 s6, s6, 1")
    a("s_load_dword s28, s[26:27], s6")
    a("v_lshlrev_b32 v2, 4, v0")
    a("buffer_load_dwordx4 v[48:51], v2, s[12:15], 0 offen")
    a("v_subrev_u32 v3, 80, v2")
    a("v_subrev_u32 v4, 64, v2")
    a("buffer_load_dwordx4 v[16:19], v3, s[8:11], 0 offen")
    a("buffer_load_dwordx4 v[20:23], v4, s[8:11], 0 offen")
    a("v_add_u32 v7, 4016, v2")
    a("buffer_load_dwordx4 v[56:59], v7, s[8:11], 0 offen")
    a("buffer_load_dwordx4 v[60:63], v7, s[8:11], 0 offen offset:16")
    a(f"s_mov_b32 s38, {2048*2048*2}")
    a("s_mov_b32 s39, 0x00020000")
    a("s_lshl_b32 s3, s2, 14")
    for q in range(4):
        a(f"buffer_load_dwordx4 v[{96+4*q}:{99+4*q}], v2, s[36:39], s3 offen")
        a("s_add_u32 s3, s3, 4096")
    def hfill(addr, B):
        for i in range(6):
            a(f"v_mov_b32 v{24+i}, v{B+1+i}")
        for i in range(7):
            a(f"v_alignbit_b32 v{30+i}, v{B+1+i}, v{B+i}, 16")
        for i in range(6):
            a(f"v_alignbit_b32 v{38+i}, v{B+2+i}, v{B+1+i}, 16")
        src = {0: 30, 2: 38, 4: 32, 6: 40, 1: 24, 3: B + 2, 5: 26, 7: B + 4}
        for j in range(8):
            a(f"ds_write_b128 v{addr}, v[{src[j]}:{src[j]+3}] offset:{j*CS}")
    a("v_lshrrev_b32 v5, 2, v0")
    a("v_mul_u32_u24 v5, 80, v5")
    a("v_and_b32 v6, 3, v0")
    a("v_lshl_add_u32 v5, v6, 4, v5")
    a("v_mov_b32 v52, 0"); a("v_mov_b32 v53, 0"); a("v_mov_b32 v54, 0"); a("v_mov_b32 v55, 0")
    a("v_cmp_gt_u32 vcc, 124, v0")
    a("s_and_saveexec_b64 s[30:31], vcc")
    a(f"ds_write_b128 v5, v[52:55] offset:{UOFF + 64*80}")
    a("s_mov_b64 exec, s[30:31]")
    a("s_waitcnt vmcnt(8)")
    a(f"ds_write_b128 v5, v[48:51] offset:{UOFF}")
    a("s_waitcnt vmcnt(6)")
    hfill(2, 16)
    a("v_add_u32 v7, 4096, v2")
    a("s_waitcnt vmcnt(4)")
    a("v_cmp_gt_u32 vcc, 4, v0")
    a("s_and_saveexec_b64 s[30:31], vcc")
    hfill(7, 56)
    a("s_mov_b64 exec, s[30:31]")
    a("v_and_b32 v1, 31, v0")
    a("v_bfe_u32 v2, v0, 5, 1")
    a("v_lshrrev_b32 v3, 6, v0")
    a("v_and_b32 v4, 7, v1")
    a(f"v_mul_u32_u24 v4, {CS}, v4")
    a("v_lshrrev_b32 v5, 3, v1")
    a("v_add_u32 v5, v5, v2")
    a("v_lshl_add_u32 v4, v5, 4, v4")
    a("v_lshl_add_u32 v4, v3, 9, v4")
    a("v_add_u32 v4, 16, v4")
    a("v_sub_u32 v5, 31, v1")
    a("v_mul_u32_u24 v5, 80, v5")
    a("v_lshl_add_u32 v5, v2, 4, v5")
    a("v_mul_u32_u24 v6, 640, v3")
    a("v_add_u32 v5, v5, v6")
    a(f"v_add_u32 v5, {UOFF}, v5")
    for i in range(32):
        a(f"v_mov_b32 v{64+i}, 0")
    a("s_waitcnt lgkmcnt(0)")
    a("s_barrier")
    steps = [(dl, c0) for dl in range(8) for c0 in (0, 16)]
    def reads(k, base):
        dl, c0 = steps[k]
        oa = 64 * dl + (32 if c0 == 0 else 0)
        ob = 80 * dl + (32 if c0 == 0 else 0)
        a(f"ds_read_b128 v[{base}:{base+3}], v4 offset:{oa}")
        a(f"ds_read_b128 v[{base+4}:{base+7}], v5 offset:{ob+2560}")
        a(f"ds_read_b128 v[{base+8}:{base+11}], v5 offset:{ob}")
        a(f"ds_read_b128 v[{base+12}:{base+15}], v4 offset:{oa+2048}")
    reads(0, 16)
    for k in range(16):
        base = 16 + 16 * (k & 1)
        if k + 1 < 16:
            reads(k + 1, 16 + 16 * ((k + 1) & 1))
            a("s_waitcnt lgkmcnt(4)")
        else:
            a("s_waitcnt lgkmcnt(0)")
        a(f"v_mfma_f32_32x32x16_bf16 v[64:79], v[{base}:{base+3}], v[{base+4}:{base+7}], v[64:79]")
        a(f"v_mfma_f32_32x32x16_bf16 v[80:95], v[{base}:{base+3}], v[{base+8}:{base+11}], v[80:95]")
        a(f"v_mfma_f32_32x32x16_bf16 v[80:95], v[{base+12}:{base+15}], v[{base+4}:{base+7}], v[80:95]")
    a("s_nop 15")
    a("s_barrier")
    a("v_and_b32 v6, 63, v0")
    a("v_lshlrev_b32 v6, 4, v6")
    a("v_lshl_add_u32 v7, v3, 13, v6")
    for q in range(8):
        a(f"ds_write_b128 v7, v[{64+4*q}:{67+4*q}] offset:{q*1024}")
    a("v_lshl_add_u32 v8, v3, 11, v6")
    a("s_waitcnt lgkmcnt(0)")
    a("s_barrier")
    for ww in range(4):
        for qq in range(2):
            r = 16 + (ww * 2 + qq) * 4
            a(f"ds_read_b128 v[{r}:{r+3}], v8 offset:{ww*8192 + qq*1024}")
    a("v_lshrrev_b32 v9, 1, v3")
    a("v_lshlrev_b32 v9, 10, v9")
    a("v_lshl_add_u32 v9, v1, 5, v9")
    a("v_and_b32 v10, 1, v3")
    a("v_lshl_add_u32 v9, v10, 4, v9")
    a("v_lshl_add_u32 v9, v2, 2, v9")
    for qq in range(2):
        a(f"v_sub_u32 v10, {2044 - 8*qq}, v9")
        a("v_lshrrev_b32 v11, 5, v10")
        a("v_mul_u32_u24 v11, 80, v11")
        a("v_and_b32 v10, 31, v10")
        a("v_lshl_add_u32 v11, v10, 1, v11")
        a(f"ds_read_b64 v[{48+2*qq}:{49+2*qq}], v11 offset:{UOFF}")
    a("s_and_b32 s6, s2, 1")
    a("s_cmp_eq_u32 s6, 1")
    a("s_cbranch_scc1 L_conv_odd")
    a("s_lshl_b32 s28, s28, 16")
    a.label("L_conv_odd")
    a("s_and_b32 s28, s28, 0xffff0000")
    a("s_waitcnt lgkmcnt(0)")
    for qq in range(2):
        for i in range(4):
            r = 16 + qq * 4 + i
            for ww in range(1, 4):
                a(f"v_add_f32 v{r}, v{r}, v{16 + (ww*2+qq)*4 + i}")
    for qq in range(2):
        r = 16 + qq * 4
        rnd2(r, r + 1, 60); rnd2(r + 2, r + 3, 60)
        unpack(55, 54, 48 + 2 * qq)
        unpack(53, 52, 49 + 2 * qq)
        for i in range(4):
            a(f"v_mul_f32 v{52+i}, s28, v{52+i}")
        rnd2(52, 53, 60); rnd2(54, 55, 60)
        for i in range(4):
            a(f"v_add_f32 v{r+i}, v{r+i}, v{52+i}")
        a(f"v_cvt_pk_bf16_f32 v{56+2*qq}, v{r}, v{r+1}")
        a(f"v_cvt_pk_bf16_f32 v{57+2*qq}, v{r+2}, v{r+3}")
    a("v_lshlrev_b32 v9, 1, v9")
    a("buffer_store_dwordx2 v[56:57], v9, s[16:19], 0 offen")
    a("buffer_store_dwordx2 v[58:59], v9, s[16:19], 0 offen offset:16")
    a.label("L_conv_end")
    a.end(K, 112)
    a.launch(K, 640, 256, LDS)

def wave_sum(v, sdst):
    a("s_nop 1")
    for sh in (1, 2, 4, 8):
        a(f"v_add_f32_dpp v{v}, v{v}, v{v} row_shr:{sh} row_mask:0xf bank_mask:0xf bound_ctrl:0")
        a("s_nop 1")
    a(f"v_add_f32_dpp v{v}, v{v}, v{v} row_bcast:15 row_mask:0xa bank_mask:0xf")
    a("s_nop 1")
    a(f"v_add_f32_dpp v{v}, v{v}, v{v} row_bcast:31 row_mask:0xc bank_mask:0xf")
    a("s_nop 1")
    a(f"v_readlane_b32 s{sdst}, v{v}, 63")
    a("s_nop 1")

def ln_stats(xs, N, t0, smb, srinv):
    def pr(x): return f"v[{x}:{x+1}]"
    n = len(xs)
    a(f"v_pk_add_f32 {pr(t0)}, {pr(xs[0])}, {pr(xs[2])}")
    for i in range(4, n, 2):
        a(f"v_pk_add_f32 {pr(t0)}, {pr(t0)}, {pr(xs[i])}")
    a(f"v_add_f32 v{t0}, v{t0}, v{t0+1}")
    wave_sum(t0, 40)
    a(f"v_mov_b32 v{t0}, s40")
    a(f"v_mul_f32 v{t0}, {-1.0/N!r}, v{t0}")
    a(f"v_mov_b32 v{t0+1}, v{t0}")
    for i in range(0, n, 2):
        a(f"v_pk_add_f32 {pr(t0+2)}, {pr(xs[i])}, {pr(t0)}")
        if i == 0:
            a(f"v_pk_mul_f32 {pr(t0+4)}, {pr(t0+2)}, {pr(t0+2)}")
        else:
            a(f"v_pk_fma_f32 {pr(t0+4)}, {pr(t0+2)}, {pr(t0+2)}, {pr(t0+4)}")
    a(f"v_add_f32 v{t0+2}, v{t0+4}, v{t0+5}")
    wave_sum(t0 + 2, 41)
    a(f"v_mov_b32 v{t0+1}, s41")
    a(f"v_mul_f32 v{t0+1}, {1.0/N!r}, v{t0+1}")
    rnd2(t0, t0 + 1, t0 + 2)
    a(f"v_add_f32 v{t0+1}, 0x3727c5ac, v{t0+1}")
    rnd2(t0 + 1, t0 + 1, t0 + 2)
    a(f"v_sqrt_f32 v{t0+1}, v{t0+1}")
    a("s_nop 0")
    rnd2(t0 + 1, t0 + 1, t0 + 2)
    a(f"v_rcp_f32 v{t0+2}, v{t0+1}")
    a(f"v_mov_b32 v{t0+1}, v{t0}")
    a(f"v_mov_b32 v{t0+3}, v{t0+2}")

def ln_apply(xs, dst, t0, tmp):
    def pr(x): return f"v[{x}:{x+1}]"
    for i in range(0, len(xs), 2):
        a(f"v_pk_add_f32 {pr(dst[i])}, {pr(xs[i])}, {pr(t0)}")
        rnd2(dst[i], dst[i + 1], tmp)
        a(f"v_pk_mul_f32 {pr(dst[i])}, {pr(dst[i])}, {pr(t0+2)}")
        rnd2(dst[i], dst[i + 1], tmp)

def gen_lnx(K, first):
    a.begin(K)
    E = f"L_{K}_end"
    def pr(x): return f"v[{x}:{x+1}]"
    a("s_cmp_ge_u32 s2, 256")
    a(f"s_cbranch_scc1 {E}")
    a(f"s_load_dwordx2 s[4:5], s[0:1], {KA['ws']}")
    a(f"s_load_dwordx2 s[6:7], s[0:1], {KA['A_q']}")
    a("s_and_b32 s3, s2, 7")
    a("s_lshl_b32 s3, s3, 5")
    a("s_lshr_b32 s2, s2, 3")
    a("s_add_u32 s2, s2, s3")
    a("v_and_b32 v1, 63, v0")
    a("v_lshrrev_b32 v2, 6, v0")
    a("s_lshl_b32 s3, s2, 3")
    a("s_lshl_b32 s24, s2, 4")
    a(f"v_mul_u32_u24 v3, {L.TS}, v0")
    a(f"v_add_u32 v4, {512*L.TS}, v3")
    a("v_add_u32 v5, s3, v2")
    a("v_mul_u32_u24 v8, 1280, v5")
    a("v_lshl_add_u32 v6, v1, 4, v8")
    a("v_lshl_add_u32 v8, v1, 2, v8")
    a("s_waitcnt lgkmcnt(0)")
    if first:
        a.srd(8, 6, 7, 2048 * 640 * 2)
    else:
        a.srd(8, 4, 5, 2048 * 640 * 2, L.X2)
    a.srd(12, 4, 5, 640 * L.TS, L.YT)
    a("buffer_load_dwordx4 v[40:43], v3, s[12:15], s24 offen")
    a("buffer_load_dwordx4 v[44:47], v4, s[12:15], s24 offen")
    a("buffer_load_dwordx4 v[48:51], v6, s[8:11], 0 offen")
    a("buffer_load_dword v52, v8, s[8:11], 0 offen offset:1024")
    NPF = 8 if os.environ.get("PF") else 0
    if NPF:
        a.srd(16, 4, 5, 640 * 1536 * 2, L.WINB)
        a("s_and_b32 s25, s2, 31")
        a("s_mul_i32 s25, s25, 61440")
        a("v_lshlrev_b32 v7, 4, v0")
        for q in range(NPF):
            a(f"buffer_load_dwordx4 v[{140+4*q}:{143+4*q}], v7, s[16:19], s25 offen")
            a("s_add_u32 s25, s25, 8192")
    a.srd(16, 4, 5, 2048 * 640 * 2, L.X1)
    a.srd(20, 4, 5, 2048 * 640 * 2, L.XNB)
    a("v_lshrrev_b32 v7, 3, v0")
    a("v_lshlrev_b32 v7, 2, v7")
    a("v_lshl_add_u32 v7, v0, 4, v7")
    a(f"s_waitcnt vmcnt({2+NPF})")
    a("ds_write2_b32 v7, v40, v41 offset0:0 offset1:1")
    a("ds_write2_b32 v7, v42, v43 offset0:2 offset1:3")
    a("v_cmp_gt_u32 vcc, 128, v0")
    a("s_and_saveexec_b64 s[30:31], vcc")
    a(f"v_add_u32 v9, {512*16 + 64*4}, v7")
    a("ds_write2_b32 v9, v44, v45 offset0:0 offset1:1")
    a("ds_write2_b32 v9, v46, v47 offset0:2 offset1:3")
    a("s_mov_b64 exec, s[30:31]")
    a("v_mul_u32_u24 v7, 132, v1")
    a("v_lshl_add_u32 v7, v2, 1, v7")
    a("v_lshrrev_b32 v9, 2, v1")
    a("v_lshlrev_b32 v9, 2, v9")
    a("v_lshl_add_u32 v9, v1, 5, v9")
    a("v_lshl_add_u32 v9, v2, 1, v9")
    a(f"s_waitcnt vmcnt({NPF}) lgkmcnt(0)")
    a("s_barrier")
    Y = list(range(80, 90))
    for i in range(8):
        a(f"ds_read_u16_d16_hi v{Y[i]}, v7 offset:{i*16}")
    for i in range(2):
        a(f"ds_read_u16_d16_hi v{Y[8+i]}, v9 offset:{512*16 + 64*4 + i*16}")
    X = list(range(60, 70))
    for i in range(5):
        unpack(X[2 * i], X[2 * i + 1], 48 + i)
    ln_stats(X, 640, 10, 42, 43)
    Q = list(range(100, 110))
    ln_apply(X, Q, 10, 16)
    a("s_waitcnt lgkmcnt(0)")
    for i in range(10):
        a(f"v_and_b32 v{Y[i]}, 0xffff0000, v{Y[i]}")
    for i in range(0, 10, 2):
        a(f"v_pk_mul_f32 {pr(Q[i])}, {pr(Q[i])}, {pr(Y[i])}")
        rnd2(Q[i], Q[i + 1], 16)
        a(f"v_pk_add_f32 {pr(X[i])}, {pr(X[i])}, {pr(Q[i])}")
        a(f"v_cvt_pk_bf16_f32 v{120+i//2}, v{X[i]}, v{X[i+1]}")
        unpack(X[i], X[i + 1], 120 + i // 2)
    a("buffer_store_dwordx4 v[120:123], v6, s[16:19], 0 offen")
    a("buffer_store_dword v124, v8, s[16:19], 0 offen offset:1024")
    ln_stats(X, 640, 10, 42, 43)
    ln_apply(X, Q, 10, 16)
    for i in range(0, 10, 2):
        a(f"v_cvt_pk_bf16_f32 v{128+i//2}, v{Q[i]}, v{Q[i+1]}")
    a("v_lshlrev_b32 v7, 15, v1")
    a("v_lshl_add_u32 v7, v5, 4, v7")
    a("buffer_store_dwordx4 v[128:131], v7, s[20:23], 0 offen")
    a("v_lshrrev_b32 v7, 2, v1")
    a("v_lshlrev_b32 v7, 15, v7")
    a("v_lshl_add_u32 v7, v5, 4, v7")
    a("v_and_b32 v9, 3, v1")
    a("v_lshl_add_u32 v7, v9, 2, v7")
    a("v_add_u32 v7, 0x200000, v7")
    a("buffer_store_dword v132, v7, s[20:23], 0 offen")
    a.label(E)
    a.end(K, 176)
    a.launch(K, 256, 512, 640 * 16 + 80 * 4)

def gen_lnz(K):
    a.begin(K)
    E = f"L_{K}_end"
    a("s_cmp_ge_u32 s2, 256")
    a(f"s_cbranch_scc1 {E}")
    a(f"s_load_dwordx2 s[4:5], s[0:1], {KA['ws']}")
    a("s_and_b32 s3, s2, 7")
    a("s_lshl_b32 s3, s3, 5")
    a("s_lshr_b32 s2, s2, 3")
    a("s_add_u32 s2, s2, s3")
    a("v_and_b32 v1, 63, v0")
    a("v_lshrrev_b32 v2, 6, v0")
    a("s_lshl_b32 s3, s2, 3")
    a("v_add_u32 v5, s3, v2")
    a("v_mul_u32_u24 v8, 1536, v5")
    a("v_lshl_add_u32 v6, v1, 4, v8")
    a("v_lshl_add_u32 v8, v1, 3, v8")
    a("s_waitcnt lgkmcnt(0)")
    a.srd(8, 4, 5, 2048 * 768 * 2, L.Z2)
    a("buffer_load_dwordx4 v[48:51], v6, s[8:11], 0 offen")
    a("buffer_load_dwordx2 v[52:53], v8, s[8:11], 0 offen offset:1024")
    a.srd(12, 4, 5, 2048 * 768 * 2, L.Z2NB)
    a("v_mul_u32_u24 v7, 132, v1")
    a("v_lshl_add_u32 v7, v2, 1, v7")
    a("v_lshrrev_b32 v9, 1, v1")
    a("v_lshlrev_b32 v9, 2, v9")
    a("v_lshl_add_u32 v9, v1, 6, v9")
    a("v_lshl_add_u32 v9, v2, 1, v9")
    a("s_waitcnt vmcnt(0)")
    X = list(range(60, 72))
    for i in range(6):
        unpack(X[2 * i], X[2 * i + 1], 48 + i)
    ln_stats(X, 768, 10, 42, 43)
    Q = list(range(100, 112))
    ln_apply(X, Q, 10, 16)
    for i in range(8):
        a(f"ds_write_b16_d16_hi v7, v{Q[i]} offset:{i*16}")
    for i in range(4):
        a(f"ds_write_b16_d16_hi v9, v{Q[8+i]} offset:{64*132 + i*16}")
    a("v_lshrrev_b32 v7, 3, v0")
    a("v_lshlrev_b32 v7, 2, v7")
    a("v_lshl_add_u32 v7, v0, 4, v7")
    a("s_mul_i32 s24, s2, 12288")
    a("v_lshlrev_b32 v8, 4, v0")
    a("s_waitcnt lgkmcnt(0)")
    a("s_barrier")
    a("ds_read2_b32 v[20:21], v7 offset0:0 offset1:1")
    a("ds_read2_b32 v[22:23], v7 offset0:2 offset1:3")
    a("v_cmp_gt_u32 vcc, 256, v0")
    a("s_and_saveexec_b64 s[30:31], vcc")
    a(f"v_add_u32 v7, {64*132}, v7")
    a("ds_read2_b32 v[24:25], v7 offset0:0 offset1:1")
    a("ds_read2_b32 v[26:27], v7 offset0:2 offset1:3")
    a("s_waitcnt lgkmcnt(0)")
    a("v_add_u32 v10, 8192, v8")
    a("buffer_store_dwordx4 v[24:27], v10, s[12:15], s24 offen")
    a("s_mov_b64 exec, s[30:31]")
    a("s_waitcnt lgkmcnt(0)")
    a("buffer_store_dwordx4 v[20:23], v8, s[12:15], s24 offen")
    a.label(E)
    a.end(K, 120)
    a.launch(K, 256, 512, 96 * 132)

def main():
    import gemm
    gen_prep()
    gen_conv()
    for layer in range(2):
        sfx = str(layer) if (GDIAG or layer == 0) else None
        gen_lnx(f"lnx{layer}_kernel", layer == 0)
        if sfx is not None:
            n1 = f"gemm1_{sfx}_kernel"; l1 = gemm.gen_gemm1(a, n1)
        a.launch(n1, 256, 512, l1)
        if os.environ.get("DUP") and layer == 0:
            n1b = "gemm1_dup_kernel"; gemm.gen_gemm1(a, n1b); a.launch(n1b, 256, 512, l1)
        if sfx is not None:
            nz = f"lnz{sfx}_kernel"; gen_lnz(nz)
        else:
            a.launch(nz, 256, 512, 96 * 132)
        if sfx is not None:
            n2 = f"gemm2_{sfx}_kernel"; l2 = gemm.gen_gemm2(a, n2)
        a.launch(n2, 256, 512, l2)
        if os.environ.get("DUP") and layer == 0:
            n2b = "gemm2_dup_kernel"; gemm.gen_gemm2(a, n2b); a.launch(n2b, 256, 512, l2)
        n3 = f"gemm3_{layer}_kernel"; l3 = gemm.gen_gemm3(a, n3, layer == 1); a.launch(n3, 256, 512, l3)
        if os.environ.get("DUP") and layer == 0:
            n3b = "gemm3_dup_kernel"; gemm.gen_gemm3(a, n3b, False); a.launch(n3b, 256, 512, l3)
    if os.environ.get("DUMMY"):
        a.begin("nop_kernel"); a.end("nop_kernel", 8)
        for _ in range(int(os.environ["DUMMY"])):
            a.launch("nop_kernel", 8, 64, 0)
    open(sys.argv[1] if len(sys.argv) > 1 else f"cdna_kernels/{NAME}.s", "w").write(a.text())

if __name__ == "__main__":
    import gen
    gen.main()
```

```python
import layout as L
import os, struct
from gen import KA
DIAG = os.environ.get("DIAG", "")
def stamp(a, K, i):
    if DIAG and DIAG in K:
        a(f"s_memtime s[{60+2*i}:{61+2*i}]")
def stamp_out(a, K, n):
    if DIAG and DIAG in K and not os.environ.get("LSTAMP"):
        a("s_waitcnt vmcnt(0) lgkmcnt(0)")
        a.srd(40, 4, 5, 1 << 20, 64 << 20)
        a("s_lshl_b32 s3, s2, 6")
        a("v_mov_b32 v5, s3")
        a("v_cmp_eq_u32 vcc, 0, v0")
        a("s_and_saveexec_b64 s[50:51], vcc")
        for i in range(n):
            a(f"v_mov_b32 v6, s{60+2*i}")
            a(f"v_mov_b32 v7, s{61+2*i}")
            a(f"buffer_store_dwordx2 v[6:7], v5, s[40:43], 0 offen offset:{8*i}")
            a("s_nop 1")
        a("s_mov_b64 exec, s[50:51]")

def magic_div(d, maxp):
    for s in range(10, 25):
        m = -(-(1 << s) // d)
        if m < (1 << 24) and all((p * m) >> s == p // d for p in range(maxp)) and maxp * m < (1 << 32):
            return m, s
    raise Exception("no magic")

def gen_gemm(a, K, BM, BN, KDIM, NST, WM, WN, MT, NT, Asrc, Bsrc, epi, pf=None, nxt=None, BARLAG=int(os.environ.get('BARLAG','0')), RPM=int(os.environ.get('RPM','1'))):
    assert WM * WN == 4
    TM = BM // WM // 16
    TN = BN // WN // 16
    LA = BM // 32
    LB = -(-BN // 32)
    LW = LA + LB
    AIMG = BM * 128
    BIMG = LB * 4 * 1024
    STAGE = AIMG + BIMG
    NK = KDIM // 64
    E = f"L_{K}_end"
    a.begin(K)
    a(f"s_cmp_ge_u32 s2, {MT*NT}")
    a(f"s_cbranch_scc1 {E}")
    stamp(a, K, 0)
    if DIAG and DIAG in K: a("s_memrealtime s[72:73]")
    a(f"s_load_dwordx2 s[4:5], s[0:1], {KA['ws']}")
    a(f"s_load_dwordx4 s[28:31], s[0:1], {KA['w_sp']}")
    a(f"s_load_dwordx2 s[32:33], s[0:1], {KA['out']}")
    MTX = MT // 8
    assert MTX * NT == 32 and (NT & (NT - 1)) == 0
    lg = NT.bit_length() - 1
    a("s_and_b32 s6, s2, 7")
    a("s_lshr_b32 s7, s2, 3")
    a(f"s_mul_i32 s22, s6, {MTX}")
    a(f"s_lshr_b32 s3, s7, {lg}")
    a("s_add_u32 s22, s22, s3")
    a(f"s_and_b32 s23, s7, {NT-1}")
    a("v_and_b32 v1, 63, v0")
    a("v_and_b32 v2, 15, v0")
    a("v_bfe_u32 v3, v0, 4, 2")
    a("v_lshrrev_b32 v4, 6, v0")
    a("s_nop 0")
    a("v_readfirstlane_b32 s21, v4")
    a(f"s_mul_i32 s34, s22, {BM}")
    a(f"s_mul_i32 s35, s23, {BN}")
    a("s_cmp_lt_u32 s21, 4")
    a(f"s_cbranch_scc1 L_{K}_comp")
    a("s_sub_u32 s21, s21, 4")
    a("s_waitcnt lgkmcnt(0)")
    LST = bool(os.environ.get("LSTAMP")) and DIAG in K
    if LST: a("s_memtime s[62:63]")
    vDA = list(range(10, 10 + LA))
    vDB = list(range(14, 14 + LB))
    NBI = BN // 8
    if Asrc[0] == 'C':
        _, off, RT = Asrc
        a.srd(8, 4, 5, RT * KDIM * 2, off)
        stepA = 8 * RT * 16
        for q in range(LA):
            a(f"s_mul_i32 s3, s21, {LA*64}")
            a(f"s_add_u32 s3, s3, {q*64}")
            a("v_add_u32 v5, s3, v1")
            lb = BM.bit_length() - 1
            assert BM == 1 << lb
            a(f"v_lshrrev_b32 v6, {lb}, v5")
            a(f"v_and_b32 v5, {BM-1}, v5")
            a(f"v_mul_u32_u24 v6, {RT}, v6")
            a("v_add3_u32 v5, v5, v6, s34")
            a(f"v_lshlrev_b32 v{vDA[q]}, 4, v5")
        swz = False
    else:
        _, rowbytes = Asrc
        a.srd(8, 28, 29, 2048 * 2048 * 2)
        stepA = 128
        for q in range(LA):
            a(f"s_mul_i32 s3, s21, {LA*64}")
            a(f"s_add_u32 s3, s3, {q*64}")
            a("v_add_u32 v5, s3, v1")
            a("v_lshrrev_b32 v6, 3, v5")
            a("v_and_b32 v5, 7, v5")
            a("v_bfe_u32 v7, v6, 1, 3")
            a("v_xor_b32 v5, v5, v7")
            a("v_add_u32 v6, s34, v6")
            a(f"v_mul_u32_u24 v6, {rowbytes}, v6")
            a(f"v_lshl_add_u32 v{vDA[q]}, v5, 4, v6")
        swz = True
    _, offB, RTB = Bsrc
    a.srd(12, 4, 5, RTB * KDIM * 2, offB)
    stepB = 8 * RTB * 16
    mg, sh = magic_div(BN, LB * 256)
    for q in range(LB):
        a(f"s_lshl_b32 s3, s21, 6")
        a(f"s_add_u32 s3, s3, {q*256}")
        a("v_add_u32 v5, s3, v1")
        a(f"v_mul_u32_u24 v6, {mg}, v5")
        a(f"v_lshrrev_b32 v6, {sh}, v6")
        a(f"v_mul_u32_u24 v7, {BN}, v6")
        a("v_sub_u32 v7, v5, v7")
        a(f"v_mul_u32_u24 v6, {RTB}, v6")
        a("v_add3_u32 v7, v7, v6, s35")
        a(f"v_lshlrev_b32 v{vDB[q]}, 4, v7")
    a(f"s_mul_i32 s24, s21, {LA*1024}")
    a(f"s_lshl_b32 s25, s21, 10")
    a(f"s_add_u32 s25, s25, {AIMG}")
    a("s_mov_b32 s16, 0")
    a("s_mov_b32 s17, 0")
    a("s_mov_b32 s18, 0")
    def loader(tag, LBw):
        LWw = LA + LBw
        def dma_stage():
            a("s_add_u32 s26, s18, s24")
            a("s_add_u32 s27, s18, s25")
            for q in range(LA):
                a(f"s_add_u32 m0, s26, {q*1024}")
                a("s_nop 0")
                if not os.environ.get("NOLOAD"): a(f"buffer_load_dwordx4 v{vDA[q]}, s[8:11], s16 offen lds")
            for q in range(LBw):
                a(f"s_add_u32 m0, s27, {q*4096}")
                a("s_nop 0")
                if not os.environ.get("NOLOAD"): a(f"buffer_load_dwordx4 v{vDB[q]}, s[12:15], s17 offen lds")
            a(f"s_add_u32 s16, s16, {0 if os.environ.get('HOTA') else stepA}")
            a(f"s_add_u32 s17, s17, {0 if os.environ.get('HOTB') else stepB}")
            a(f"s_add_u32 s18, s18, {STAGE}")
            a(f"s_cmp_eq_u32 s18, {NST*STAGE}")
            a("s_cselect_b32 s18, 0, s18")
        issued = 0
        def issue_upto(n):
            nonlocal issued
            while issued < min(n, NK):
                dma_stage(); issued += 1
        b = 0
        if LST:
            a("s_memtime s[64:65]")
            issue_upto(1)
            a("s_memtime s[66:67]")
            a("s_waitcnt vmcnt(0)")
            a("s_memtime s[68:69]")
            issue_upto(2)
            a("s_waitcnt vmcnt(0)")
            a("s_memtime s[70:71]")
        issue_upto(min(int(os.environ.get('INIT','3')), NST))
        looped = False
        while b <= NK:
            nloop = NK - issued
            steady = (issued == b + NST) or (os.environ.get('RAMP','2') == '1')
            if not looped and b >= 1 and steady and nloop >= 2:
                a(f"s_mov_b32 s20, {nloop}")
                a.label(f"L_{K}_lloop{tag}")
                a(f"s_waitcnt vmcnt({(issued - b - 2)*LWw})")
                a("s_barrier")
                dma_stage()
                a("s_sub_u32 s20, s20, 1")
                a("s_cmp_lg_u32 s20, 0")
                a(f"s_cbranch_scc1 L_{K}_lloop{tag}")
                b += nloop; issued += nloop
                looped = True
                continue
            need = min(b + 1, NK - 1)
            a(f"s_waitcnt vmcnt({(issued - need - 1) * LWw})")
            a("s_barrier")
            lim = (b + NST + 1) if b >= 1 else NST
            issue_upto(min(issued + int(os.environ.get('RAMP','2')), lim))
            b += 1
        if pf is not None and os.environ.get("PF"):
            kind, nbytes_wg = pf
            a("s_lshr_b32 s3, s2, 3")
            if kind == 'wsp':
                a.srd(52, 28, 29, 2048 * 2048 * 2)
                a("s_and_b32 s6, s2, 7")
                a("s_lshl_b32 s6, s6, 5")
                a("s_add_u32 s3, s3, s6")
            else:
                a.srd(52, 4, 5, 768 * 640 * 2, L.WOUTB)
            a(f"s_mul_i32 s3, s3, {nbytes_wg}")
            a("v_lshlrev_b32 v5, 4, v1")
            a(f"v_lshl_add_u32 v5, s21, 10, v5")
            a("v_add_u32 v5, s3, v5")
            for q in range(-(-nbytes_wg // 4096)):
                a(f"buffer_load_dwordx4 v[{20+4*q}:{23+4*q}], v5, s[52:55], 0 offen")
                a("v_add_u32 v5, 4096, v5")
        a.code_pf(nxt, 5, 24)
        if LST:
            a("s_waitcnt lgkmcnt(0)")
            a.srd(40, 4, 5, 1 << 20, 64 << 20)
            a("s_lshl_b32 s3, s2, 6")
            a("v_mov_b32 v5, s3")
            a("v_cmp_eq_u32 vcc, 256, v0")
            a("s_and_saveexec_b64 s[50:51], vcc")
            for i in range(6):
                a(f"v_mov_b32 v6, s{60+2*i}")
                a(f"v_mov_b32 v7, s{61+2*i}")
                a(f"buffer_store_dwordx2 v[6:7], v5, s[40:43], 0 offen offset:{8*i}")
                a("s_nop 1")
            a("s_mov_b64 exec, s[50:51]")
        a(f"s_branch {E if not epi.split else 'L_' + K + '_ldepi'}")
    if NBI % 4 == 0:
        loader("", LB)
    else:
        a(f"s_cmp_lt_u32 s21, {NBI % 4}")
        a(f"s_cbranch_scc0 L_{K}_ld2")
        loader("a", LB)
        a.label(f"L_{K}_ld2")
        loader("b", LB - 1)
    a.label(f"L_{K}_comp")
    vRA0, vRA1, vRB, vA0c, vA1c, vBc = 18, 19, 20, 21, 22, 23
    F0 = 24
    NF = (TM + TN) * 4
    ACC = F0 + 4 * NF
    NACC = TM * TN * 4
    EP = ACC + NACC
    wm_rows = BM // WM
    wn_cols = BN // WN
    if WN == 2:
        a("s_lshr_b32 s36, s21, 1")
        a("s_and_b32 s37, s21, 1")
    else:
        a("s_mov_b32 s36, s21")
        a("s_mov_b32 s37, 0")
    a(f"s_mul_i32 s36, s36, {wm_rows}")
    a(f"s_mul_i32 s37, s37, {wn_cols}")
    if not swz:
        a(f"v_mul_u32_u24 v5, {BM}, v3")
        a("v_add3_u32 v5, v5, v2, s36")
        a(f"v_lshlrev_b32 v{vRA0}, 4, v5")
        def a_off(kk, tm): return kk * 4 * BM * 16 + tm * 256
        def a_reg(kk): return vA0c
    else:
        a("v_lshrrev_b32 v5, 1, v2")
        a("v_xor_b32 v5, v5, v3")
        a("v_add_u32 v6, s36, v2")
        a("v_lshlrev_b32 v6, 7, v6")
        a(f"v_lshl_add_u32 v{vRA0}, v5, 4, v6")
        a(f"v_xor_b32 v{vRA1}, 64, v{vRA0}")
        def a_off(kk, tm): return tm * 2048
        def a_reg(kk): return vA0c if kk == 0 else vA1c
    a(f"v_mul_u32_u24 v5, {BN}, v3")
    a("v_add3_u32 v5, v5, v2, s37")
    a(f"v_lshlrev_b32 v5, 4, v5")
    a(f"v_add_u32 v{vRB}, {AIMG}, v5")
    def b_off(kk, tn): return kk * 4 * BN * 16 + tn * 256
    for i in range(NACC):
        a(f"v_mov_b32 v{ACC+i}, 0")
    a("s_waitcnt lgkmcnt(0)")
    epi.pre(a, dict(TM=TM, TN=TN, EP=EP, BM=BM, BN=BN))
    def set_addr():
        a(f"v_add_u32 v{vA0c}, s19, v{vRA0}")
        if swz:
            a(f"v_add_u32 v{vA1c}, s19, v{vRA1}")
        a(f"v_add_u32 v{vBc}, s19, v{vRB}")
    def read_list(kk, F):
        out = []
        if os.environ.get("NOCOMP") or os.environ.get("NOREAD"): return out
        for tm in range(TM):
            r = F + tm * 4
            out.append(f"ds_read_b128 v[{r}:{r+3}], v{a_reg(kk)} offset:{a_off(kk, tm)}")
        for tn in range(TN):
            r = F + TM * 4 + tn * 4
            out.append(f"ds_read_b128 v[{r}:{r+3}], v{vBc} offset:{b_off(kk, tn)}")
        return out
    def mfma_list(F):
        out = []
        for tm in range(TM):
            for tn in range(TN):
                c = ACC + (tm * TN + tn) * 4
                ra = F + tm * 4
                rb = F + TM * 4 + tn * 4
                out.append("s_nop 0" if os.environ.get("NOCOMP") else f"v_mfma_f32_16x16x32_bf16 v[{c}:{c+3}], v[{rb}:{rb+3}], v[{ra}:{ra+3}], v[{c}:{c+3}]")
        return out
    def adv():
        a(f"s_add_u32 s19, s19, {STAGE}")
        a(f"s_cmp_eq_u32 s19, {NST*STAGE}")
        a("s_cselect_b32 s19, 0, s19")
        set_addr()
    a("s_mov_b32 s19, 0")
    a(f"s_mov_b32 s20, {NK//2}")
    set_addr()
    a("s_mov_b32 s82, 0")
    stamp(a, K, 1)
    a("s_barrier")
    stamp(a, K, 2)
    for r in read_list(0, F0) + read_list(1, F0 + NF):
        a(r)
    adv()
    a("s_waitcnt lgkmcnt(0)")
    LP = f"L_{K}_loop"
    a.label(LP)
    for par in range(2):
        cur = F0 + par * 2 * NF
        nxt = F0 + (1 - par) * 2 * NF
        rl = read_list(0, nxt) + read_list(1, nxt + NF)
        ml = mfma_list(cur) + mfma_list(cur + NF)
        nbefore = len(ml) - BARLAG
        ri = 0
        for mi, m in enumerate(ml):
            if mi == nbefore:
                while ri < len(rl):
                    a(rl[ri]); ri += 1
                a("s_waitcnt lgkmcnt(0)")
                a("s_barrier")
                if os.environ.get("ITSTAMP") and DIAG in K:
                    a("s_memtime s[80:81]")
                    a("s_waitcnt lgkmcnt(0)")
                    a("s_mov_b32 m0, s82"); a("s_nop 0"); a("v_writelane_b32 v250, s80, m0")
                    a("s_add_u32 s82, s82, 1")
            a(m)
            for _ in range(RPM):
                if ri < len(rl) and mi < nbefore:
                    a(rl[ri]); ri += 1
        if nbefore == len(ml):
            while ri < len(rl):
                a(rl[ri]); ri += 1
            adv()
            a("s_waitcnt lgkmcnt(0)")
            a("s_barrier")
        else:
            adv()
    a("s_sub_u32 s20, s20, 1")
    a("s_cmp_lg_u32 s20, 0")
    a(f"s_cbranch_scc1 {LP}")
    stamp(a, K, 3)
    a("s_nop 7")
    a("s_nop 1")
    a("s_waitcnt vmcnt(0) lgkmcnt(0)")
    stamp(a, K, 4)
    if epi.split:
        H = TM // 2
        nq = H * TN
        a("v_lshlrev_b32 v5, 4, v1")
        a(f"s_mul_i32 s3, s21, {nq*1024}")
        a("v_add_u32 v5, s3, v5")
        for q in range(nq):
            c = ACC + (H * TN + q) * 4
            a(f"ds_write_b128 v5, v[{c}:{c+3}] offset:{q*1024}")
        a("s_waitcnt lgkmcnt(0)")
        a("s_barrier")
        a(f"s_branch L_{K}_epi")
        a.label(f"L_{K}_ldepi")
        if WN == 2:
            a("s_lshr_b32 s36, s21, 1")
            a("s_and_b32 s37, s21, 1")
        else:
            a("s_mov_b32 s36, s21")
            a("s_mov_b32 s37, 0")
        a(f"s_mul_i32 s36, s36, {wm_rows}")
        a(f"s_add_u32 s36, s36, {H*16}")
        a(f"s_mul_i32 s37, s37, {wn_cols}")
        a("v_lshlrev_b32 v5, 4, v1")
        a(f"s_mul_i32 s3, s21, {nq*1024}")
        a("v_add_u32 v5, s3, v5")
        a("s_barrier")
        for q in range(nq):
            c = ACC + q * 4
            a(f"ds_read_b128 v[{c}:{c+3}], v5 offset:{q*1024}")
        a("s_waitcnt lgkmcnt(0)")
        a.label(f"L_{K}_epi")
        epi.post(a, dict(TM=H, TN=TN, EP=EP, ACC=ACC, BM=BM, BN=BN))
    else:
        epi.post(a, dict(TM=TM, TN=TN, EP=EP, ACC=ACC, BM=BM, BN=BN))
    if DIAG and DIAG in K:
        a("s_waitcnt vmcnt(0)")
    stamp(a, K, 5)
    if DIAG and DIAG in K: a("s_memrealtime s[74:75]")
    stamp_out(a, K, 8)
    if os.environ.get("ITSTAMP") and DIAG in K:
        a.srd(40, 4, 5, 1 << 20, 66 << 20)
        a("s_lshl_b32 s3, s2, 8")
        a("v_lshl_add_u32 v5, v1, 2, s3")
        a("s_cmp_eq_u32 s21, 0")
        a(f"s_cbranch_scc0 {E}")
        a("buffer_store_dword v250, v5, s[40:43], 0 offen")
    a.label(E)
    a.end(K, 256 if os.environ.get("ITSTAMP") else EP + epi.nregs)
    return NST * STAGE

def unpack(a, lo, hi, src):
    a(f"v_lshlrev_b32 v{lo}, 16, v{src}")
    a(f"v_and_b32 v{hi}, 0xffff0000, v{src}")

def rnd2(a, x0, x1, tmp):
    a(f"v_cvt_pk_bf16_f32 v{tmp}, v{x0}, v{x1}")
    unpack(a, x0, x1, tmp)

class Epi1:
    nregs = 16
    split = True
    def pre(self, a, c):
        pass
    def post(self, a, c):
        TM, TN, EP, ACC = c['TM'], c['TN'], c['EP'], c['ACC']
        EP += EP & 1
        a("s_cmp_lt_u32 s23, 8")
        a(f"s_mov_b32 s3, {L.Z2}")
        a(f"s_cselect_b32 s3, {L.Z1}, s3")
        a("s_add_u32 s40, s4, s3")
        a("s_addc_u32 s41, s5, 0")
        a(f"s_mov_b32 s42, {2048*768*2}")
        a("s_mov_b32 s43, 0x00020000")
        a("s_and_b32 s3, s23, 7")
        a("s_mul_i32 s3, s3, 96")
        a("s_add_u32 s3, s3, s37")
        a("s_add_u32 s6, s34, s36")
        a("v_add_u32 v5, s6, v2")
        a("v_mul_u32_u24 v5, 1536, v5")
        a("v_lshl_add_u32 v6, v3, 2, s3")
        a("v_lshl_add_u32 v5, v6, 1, v5")
        c1 = struct.unpack("<I", struct.pack("<f", -2.302208198))[0]
        c2 = struct.unpack("<I", struct.pack("<f", -0.1029432397))[0]
        C1, C2, ONE = EP + 6, EP + 8, EP + 10
        for r, v in ((C1, c1), (C2, c2), (ONE, 0x3f800000)):
            a(f"v_mov_b32 v{r}, {v:#x}")
            a(f"v_mov_b32 v{r+1}, {v:#x}")
        T = EP
        def pr(x): return f"v[{x}:{x+1}]"
        for tm in range(TM):
            for tn in range(TN):
                cc = ACC + (tm * TN + tn) * 4
                rnd2(a, cc, cc + 1, T + 4)
                rnd2(a, cc + 2, cc + 3, T + 5)
                for h in (0, 2):
                    a(f"v_pk_mul_f32 {pr(T+h)}, {pr(cc+h)}, {pr(cc+h)}")
                for h in (0, 2):
                    a(f"v_pk_fma_f32 {pr(T+h)}, {pr(T+h)}, {pr(C2)}, {pr(C1)}")
                for h in (0, 2):
                    a(f"v_pk_mul_f32 {pr(T+h)}, {pr(T+h)}, {pr(cc+h)}")
                for i in range(4):
                    a(f"v_exp_f32 v{T+i}, v{T+i}")
                a("s_nop 0")
                for h in (0, 2):
                    a(f"v_pk_add_f32 {pr(T+h)}, {pr(T+h)}, {pr(ONE)}")
                for i in range(4):
                    a(f"v_rcp_f32 v{T+i}, v{T+i}")
                a("s_nop 0")
                for h in (0, 2):
                    a(f"v_pk_mul_f32 {pr(T+h)}, {pr(T+h)}, {pr(cc+h)}")
                a(f"v_cvt_pk_bf16_f32 v{cc}, v{T}, v{T+1}")
                a(f"v_cvt_pk_bf16_f32 v{cc+1}, v{T+2}, v{T+3}")
                if tm > 0 and tn == 0:
                    a(f"v_add_u32 v5, {16*1536}, v5")
                if not os.environ.get("NOSTORE"): a(f"buffer_store_dwordx2 v[{cc}:{cc+1}], v5, s[40:43], 0 offen offset:{tn*32}")

class Epi2:
    nregs = 32
    split = False
    def pre(self, a, c):
        TM, TN, EP = c['TM'], c['TN'], c['EP']
        a.srd(40, 4, 5, 2048 * 768 * 2, L.Z1)
        a.srd(44, 30, 31, 2048 * 2)
        a("s_add_u32 s3, s35, s37")
        a("s_add_u32 s6, s34, s36")
        a("v_add_u32 v8, s6, v2")
        a("v_mul_u32_u24 v5, 1536, v8")
        a("v_lshl_add_u32 v6, v3, 2, s3")
        a("v_lshl_add_u32 v5, v6, 1, v5")
        a("v_lshlrev_b32 v7, 1, v8")
        for tm in range(TM):
            if tm > 0:
                a(f"v_add_u32 v5, {16*1536}, v5")
            for tn in range(TN):
                r = EP + (tm * TN + tn) * 2
                a(f"buffer_load_dwordx2 v[{r}:{r+1}], v5, s[40:43], 0 offen offset:{tn*32}")
            a(f"buffer_load_ushort v{EP+TM*TN*2+tm}, v7, s[44:47], 0 offen offset:{tm*32}")
        a("v_lshrrev_b32 v6, 3, v6")
        a("v_lshlrev_b32 v6, 15, v6")
        a("v_lshl_add_u32 v6, v8, 4, v6")
        a("v_and_b32 v7, 1, v3")
        a("v_lshl_add_u32 v9, v7, 3, v6")
    def post(self, a, c):
        TM, TN, EP, ACC = c['TM'], c['TN'], c['EP'], c['ACC']
        a.srd(40, 4, 5, 2048 * 768 * 2, L.HB)
        T = EP + TM * TN * 2 + TM
        for tm in range(TM):
            b = EP + TM * TN * 2 + tm
            a(f"v_lshlrev_b32 v{b}, 16, v{b}")
            for tn in range(TN):
                cc = ACC + (tm * TN + tn) * 4
                z = EP + (tm * TN + tn) * 2
                rnd2(a, cc, cc + 1, T + 4)
                rnd2(a, cc + 2, cc + 3, T + 4)
                for i in range(4):
                    a(f"v_add_f32 v{cc+i}, v{cc+i}, v{b}")
                rnd2(a, cc, cc + 1, T + 4)
                rnd2(a, cc + 2, cc + 3, T + 4)
                unpack(a, T, T + 1, z)
                unpack(a, T + 2, T + 3, z + 1)
                for i in range(4):
                    a(f"v_mul_f32 v{cc+i}, v{cc+i}, v{T+i}")
                a(f"v_cvt_pk_bf16_f32 v{cc}, v{cc}, v{cc+1}")
                a(f"v_cvt_pk_bf16_f32 v{cc+1}, v{cc+2}, v{cc+3}")
                a(f"v_add_u32 v{T+5}, {tn*2*32768 + tm*256}, v9")
                a(f"buffer_store_dwordx2 v[{cc}:{cc+1}], v{T+5}, s[40:43], 0 offen")

class Epi3:
    nregs = 24
    split = False
    def __init__(self, final):
        self.final = final
    def pre(self, a, c):
        TM, TN, EP = c['TM'], c['TN'], c['EP']
        a.srd(40, 4, 5, 2048 * 640 * 2, L.X1)
        a("s_add_u32 s3, s35, s37")
        a("s_add_u32 s6, s34, s36")
        a("v_add_u32 v8, s6, v2")
        a("v_mul_u32_u24 v5, 1280, v8")
        a("v_lshl_add_u32 v6, v3, 2, s3")
        a("v_lshl_add_u32 v9, v6, 1, v5")
        for tm in range(TM):
            for tn in range(TN):
                r = EP + (tm * TN + tn) * 2
                assert tm == 0
                a(f"buffer_load_dwordx2 v[{r}:{r+1}], v9, s[40:43], 0 offen offset:{tn*32}")
    def post(self, a, c):
        TM, TN, EP, ACC = c['TM'], c['TN'], c['EP'], c['ACC']
        if self.final:
            a.srd(40, 32, 33, 2048 * 640 * 2)
        else:
            a.srd(40, 4, 5, 2048 * 640 * 2, L.X2)
        T = EP + TM * TN * 2
        for tm in range(TM):
            for tn in range(TN):
                cc = ACC + (tm * TN + tn) * 4
                z = EP + (tm * TN + tn) * 2
                rnd2(a, cc, cc + 1, T + 4)
                rnd2(a, cc + 2, cc + 3, T + 4)
                unpack(a, T, T + 1, z)
                unpack(a, T + 2, T + 3, z + 1)
                for i in range(4):
                    a(f"v_add_f32 v{cc+i}, v{cc+i}, v{T+i}")
                a(f"v_cvt_pk_bf16_f32 v{cc}, v{cc}, v{cc+1}")
                a(f"v_cvt_pk_bf16_f32 v{cc+1}, v{cc+2}, v{cc+3}")
                a(f"buffer_store_dwordx2 v[{cc}:{cc+1}], v9, s[40:43], 0 offen offset:{tn*32}")

def gen_gemm1(a, K):
    return gen_gemm(a, K, 128, 96, 640, 5, 2, 2, 16, 16, ('C', L.XNB, 2048), ('C', L.WINB, 1536), Epi1(), pf=('wsp', 32768), nxt=[K.replace('gemm1_', 'lnz')])
def gen_gemm2(a, K):
    return gen_gemm(a, K, 64, 96, 2048, 7, 2, 2, 32, 8, ('R', 4096), ('C', L.Z2NB, 768), Epi2(), pf=('wout', 30720), nxt=['gemm3_0_kernel', 'gemm3_1_kernel'])
def gen_gemm3(a, K, final):
    return gen_gemm(a, K, 64, 80, 768, 7, 4, 1, 32, 8, ('C', L.HB, 2048), ('C', L.WOUTB, 640), Epi3(final), nxt=None if final else ['lnx1_kernel'])
```

```python
import sys
import layout as L
import os
GDIAG = bool(os.environ.get('GDIAG'))

NAME = "interleave_layers__ssm_conv_h3__mixer_gmlp__prompt"
KA = dict(A_q=0, A_k=8, A_v=16, shift_k=24, ssm_k=32, ssm_D=40, B_x=48, w_in=56, w_sp=64, b_sp=72, w_out=80,
          out=88, dbg=96, ws=104)

class Asm:
    def __init__(self):
        self.lines = []
        self.kernels = []
        self.launches = []
        self.uid = 0
        self.wgreg = 2
        self.next_of = {}
    def __call__(self, s):
        for ln in s.strip("\n").split("\n"):
            ln = ln.strip()
            if ln:
                self.lines.append("    " + ln)
    def label(self, l):
        self.lines.append(l + ":")
    def newlabel(self, base):
        self.uid += 1
        return f"L_{base}_{self.uid}"
    def begin(self, label):
        self.lines += [f".globl {label}", ".p2align 8", f".type {label},@function", f"{label}:"]
        if GDIAG:
            self("s_memrealtime s[96:97]")
            self("s_mov_b32 s95, s2")
    def end(self, label, vgpr, sgpr=102):
        if GDIAG:
            idx = len(self.kernels)
            self("s_mov_b64 exec, -1")
            self("s_waitcnt vmcnt(0) lgkmcnt(0)")
            self("s_memrealtime s[98:99]")
            self("s_load_dwordx2 s[88:89], s[0:1], 104")
            self("s_waitcnt lgkmcnt(0)")
            self(f"s_add_u32 s88, s88, {(80 << 20) + idx * (1 << 20)}")
            self("s_addc_u32 s89, s89, 0")
            self(f"s_mov_b32 s90, {1 << 20}")
            self("s_mov_b32 s91, 0x00020000")
            self("s_lshl_b32 s95, s95, 8")
            self("v_lshrrev_b32 v1, 6, v0")
            self("v_lshlrev_b32 v1, 4, v1")
            self("v_add_u32 v1, s95, v1")
            self("v_and_b32 v2, 63, v0")
            self("v_cmp_eq_u32 vcc, 0, v2")
            self("s_and_saveexec_b64 s[92:93], vcc")
            self("v_mov_b32 v4, s96"); self("v_mov_b32 v5, s97"); self("v_mov_b32 v6, s98"); self("v_mov_b32 v7, s99")
            self("buffer_store_dwordx4 v[4:7], v1, s[88:91], 0 offen")
            vgpr = max(vgpr, 8)
        self.lines.append("    s_endpgm")
        self.kernels.append((label, vgpr, sgpr))
    def launch(self, label, grid, block, lds):
        self.launches.append((label, grid, block, lds))
    def srd(self, d, base_lo, base_hi, nbytes, add=0):
        if add:
            self(f"s_add_u32 s{d}, s{base_lo}, {add}")
            self(f"s_addc_u32 s{d+1}, s{base_hi}, 0")
        else:
            self(f"s_mov_b32 s{d}, s{base_lo}")
            self(f"s_mov_b32 s{d+1}, s{base_hi}")
        self(f"s_mov_b32 s{d+2}, {nbytes}")
        self(f"s_mov_b32 s{d+3}, 0x00020000")
    def code_pf(self, nxts, vaddr, vdst):
        if os.environ.get("NOCPF") or not nxts:
            return
        self.uid += 1
        u = self.uid
        self(f"s_cmp_ge_u32 s2, 8")
        self(f"s_cbranch_scc1 L_cpf_{u}")
        self(f"v_lshlrev_b32 v{vaddr}, 4, v0")
        for i, nxt in enumerate(nxts):
            self("s_getpc_b64 s[100:101]")
            self.label(f"L_cpfpc_{u}_{i}")
            self(f"s_add_u32 s100, s100, {nxt}-L_cpfpc_{u}_{i}")
            self(f"s_addc_u32 s101, s101, ({nxt}-L_cpfpc_{u}_{i})>>32")
            self(f"v_cmp_gt_u32 vcc, L_text_end-{nxt}-16, v{vaddr}")
            self("s_and_saveexec_b64 s[98:99], vcc")
            self(f"global_load_dwordx4 v[{vdst}:{vdst+3}], v{vaddr}, s[100:101]")
            self("s_mov_b64 exec, s[98:99]")
        self.label(f"L_cpf_{u}")
    def text(self):
        hdr = open(f"cdna_kernels/{NAME}.s.ref").read().split("; Override launch geometry")[0]
        out = [hdr.rstrip("\n")]
        for (label, g, b, lds) in self.launches:
            out.append(f"; @launch kernel={label} grid=({g},1,1) block=({b},1,1) lds={lds}")
        out.append('.amdgcn_target "amdgcn-amd-amdhsa--gfx950"')
        out.append(".text")
        out += self.lines
        out.append("L_text_end:")
        out.append('.section .rodata,"a"')
        for (label, vgpr, sgpr) in self.kernels:
            acc = (vgpr + 3) // 4 * 4
            out += [".p2align 6", f".amdhsa_kernel {label}",
                    f"  .amdhsa_next_free_vgpr {vgpr}", f"  .amdhsa_next_free_sgpr {sgpr}",
                    f"  .amdhsa_accum_offset {acc}", "  .amdhsa_group_segment_fixed_size 0",
                    "  .amdhsa_kernarg_size 112", "  .amdhsa_user_sgpr_count 2",
                    "  .amdhsa_user_sgpr_kernarg_segment_ptr 1", "  .amdhsa_system_sgpr_workgroup_id_x 1",
                    ".end_amdhsa_kernel"]
        return "\n".join(out) + "\n"

a = Asm()

def unpack(dst_lo, dst_hi, src):
    a(f"v_lshlrev_b32 v{dst_lo}, 16, v{src}")
    a(f"v_and_b32 v{dst_hi}, 0xffff0000, v{src}")

def rnd2(x0, x1, tmp):
    a(f"v_cvt_pk_bf16_f32 v{tmp}, v{x0}, v{x1}")
    unpack(x0, x1, tmp)

def gen_prep():
    K = "prep_kernel"
    a.begin(K)
    a("s_cmp_ge_u32 s2, 424")
    a("s_cbranch_scc1 L_prep_end")
    a("s_cmp_ge_u32 s2, 344")
    a("s_cbranch_scc1 L_prep_touch")
    a(f"s_load_dwordx2 s[4:5], s[0:1], {KA['ws']}")
    a("s_mov_b32 s30, 0x05040100")
    a("s_mov_b32 s31, 0x07060302")
    a("s_cmp_lt_u32 s2, 160")
    a("s_cbranch_scc0 L_prep_w")
    a(f"s_load_dwordx4 s[24:27], s[0:1], {KA['A_k']}")
    a(f"s_load_dwordx2 s[28:29], s[0:1], {KA['shift_k']}")
    a("s_mul_i32 s3, s2, 52429")
    a("s_lshr_b32 s3, s3, 18")
    a("s_mul_i32 s6, s3, 5")
    a("s_sub_u32 s6, s2, s6")
    a("s_lshl_b32 s6, s6, 6")
    a("s_lshl_b32 s3, s3, 3")
    a("v_and_b32 v1, 63, v0")
    a("v_add_u32 v1, s6, v1")
    a("v_lshrrev_b32 v2, 6, v0")
    a("v_add_u32 v2, s3, v2")
    a("v_mul_u32_u24 v3, 10240, v2")
    a("v_lshl_add_u32 v3, v1, 2, v3")
    a("v_lshlrev_b32 v4, 4, v1")
    a("s_waitcnt lgkmcnt(0)")
    a.srd(8, 24, 25, 2048 * 640 * 2)
    a.srd(12, 26, 27, 2048 * 640 * 2)
    a.srd(16, 28, 29, 640 * 4 * 2)
    a.srd(20, 4, 5, 640 * L.TS, L.URT)
    a("buffer_load_dwordx4 v[48:51], v4, s[16:19], 0 offen")
    for i in range(3):
        off = (i - 3) * 1280
        a(f"v_add_u32 v4, {off & 0xffffffff}, v3")
        a(f"buffer_load_dword v{10+i}, v4, s[8:11], 0 offen")
    a("v_add_u32 v4, 5120, v3")
    for i in range(8):
        a(f"buffer_load_dword v{13+i}, v{3 if i < 4 else 4}, s[8:11], 0 offen offset:{(i & 3) * 1280}")
    for i in range(8):
        a(f"buffer_load_dword v{30+i}, v{3 if i < 4 else 4}, s[12:15], 0 offen offset:{(i & 3) * 1280}")
    a("s_waitcnt vmcnt(8)")
    unpack(92, 94, 48); unpack(96, 98, 49); unpack(93, 95, 50); unpack(97, 99, 51)
    for i in range(11):
        unpack(52 + 2 * i, 53 + 2 * i, 10 + i)
    a("s_waitcnt vmcnt(0)")
    def pr(x): return f"v[{x}:{x+1}]"
    for i in range(8):
        a(f"v_pk_mul_f32 {pr(100)}, {pr(52+2*i)}, {pr(98)}")
        rnd2(100, 101, 104)
        for j in (2, 1, 0):
            ki = i + 3 - j
            a(f"v_pk_mul_f32 {pr(102)}, {pr(52+2*ki)}, {pr(92+2*j)}")
            rnd2(102, 103, 104)
            a(f"v_pk_add_f32 {pr(100)}, {pr(100)}, {pr(102)}")
            rnd2(100, 101, 104)
        unpack(102, 103, 30 + i)
        a(f"v_pk_mul_f32 {pr(100)}, {pr(100)}, {pr(102)}")
        a(f"v_cvt_pk_bf16_f32 v{110+i}, v100, v101")
    for m in range(4):
        a(f"v_perm_b32 v{120+m}, v{110+6-2*m}, v{110+7-2*m}, s30")
        a(f"v_perm_b32 v{124+m}, v{110+6-2*m}, v{110+7-2*m}, s31")
    a(f"v_mul_u32_u24 v4, {2*L.TS}, v1")
    a("v_lshlrev_b32 v5, 4, v2")
    a("v_sub_u32 v4, v4, v5")
    a("v_add_u32 v4, 4080, v4")
    a(f"v_add_u32 v5, {L.TS}, v4")
    a("buffer_store_dwordx4 v[120:123], v4, s[20:23], 0 offen")
    a("buffer_store_dwordx4 v[124:127], v5, s[20:23], 0 offen")
    a("s_branch L_prep_end")
    a.label("L_prep_w")
    a("s_cmp_lt_u32 s2, 280")
    a("s_cbranch_scc0 L_prep_c")
    a(f"s_load_dwordx2 s[24:25], s[0:1], {KA['w_in']}")
    a("s_sub_u32 s3, s2, 160")
    a("s_lshl_b32 s3, s3, 9")
    a("v_add_u32 v1, s3, v0")
    a("v_lshrrev_b32 v2, 8, v1")
    a("v_mul_u32_u24 v2, 21846, v2")
    a("v_lshrrev_b32 v2, 16, v2")
    a("v_mul_u32_u24 v3, 768, v2")
    a("v_sub_u32 v1, v1, v3")
    a("s_waitcnt lgkmcnt(0)")
    a.srd(8, 24, 25, 640 * 1536 * 2)
    a.srd(20, 4, 5, 640 * 1536 * 2, L.WINB)
    a("s_mov_b32 s34, 3072")
    a("s_mov_b32 s35, 1536")
    a("s_branch L_prep_wc")
    a.label("L_prep_c")
    a(f"s_load_dwordx2 s[24:25], s[0:1], {KA['w_out']}")
    a("s_sub_u32 s3, s2, 280")
    a("s_lshl_b32 s3, s3, 9")
    a("v_add_u32 v1, s3, v0")
    a("v_mul_u32_u24 v2, 52429, v1")
    a("v_lshrrev_b32 v2, 24, v2")
    a("v_mul_u32_u24 v3, 320, v2")
    a("v_sub_u32 v1, v1, v3")
    a("s_waitcnt lgkmcnt(0)")
    a.srd(8, 24, 25, 768 * 640 * 2)
    a.srd(20, 4, 5, 768 * 640 * 2, L.WOUTB)
    a("s_mov_b32 s34, 1280")
    a("s_mov_b32 s35, 640")
    a.label("L_prep_wc")
    a("v_lshlrev_b32 v3, 3, v2")
    a("v_mul_lo_u32 v3, v3, s34")
    a("v_lshl_add_u32 v3, v1, 2, v3")
    for i in range(8):
        a(f"buffer_load_dword v{10+i}, v3, s[8:11], 0 offen")
        if i < 7:
            a("v_add_u32 v3, s34, v3")
    a("v_mul_lo_u32 v4, v2, s35")
    a("v_lshl_add_u32 v4, v1, 1, v4")
    a("v_lshlrev_b32 v4, 4, v4")
    a("s_waitcnt vmcnt(0)")
    for m in range(4):
        a(f"v_perm_b32 v{20+m}, v{10+2*m+1}, v{10+2*m}, s30")
        a(f"v_perm_b32 v{24+m}, v{10+2*m+1}, v{10+2*m}, s31")
    a("buffer_store_dwordx4 v[20:23], v4, s[20:23], 0 offen")
    a("buffer_store_dwordx4 v[24:27], v4, s[20:23], 0 offen offset:16")
    a("s_branch L_prep_end")
    a.label("L_prep_touch")
    if os.environ.get("CODEPF", "1") == "1":
        a("s_cmp_ge_u32 s2, 360")
        a("s_cbranch_scc1 L_prep_t1")
        a("s_getpc_b64 s[12:13]")
        a.label("L_prep_pc")
        a("s_add_u32 s12, s12, conv_kernel-L_prep_pc")
        a("s_addc_u32 s13, s13, 0")
        a("v_lshlrev_b32 v1, 4, v0")
        a("s_mov_b32 s14, 0")
        a.label("L_prep_cl")
        a("v_cmp_gt_u32 vcc, L_text_end-conv_kernel-16, v1")
        a("s_and_saveexec_b64 s[16:17], vcc")
        a("s_cbranch_execz L_prep_cd")
        a("global_load_dwordx4 v[48:51], v1, s[12:13]")
        a("v_add_u32 v1, 8192, v1")
        a("s_branch L_prep_cl")
        a.label("L_prep_cd")
        a("s_mov_b64 exec, -1")
        a.label("L_prep_t1")
    a("s_sub_u32 s3, s2, 344")
    a(f"s_mov_b32 s6, {KA['A_q']}")
    a("s_cmp_lt_u32 s3, 40")
    a("s_cbranch_scc1 L_prep_t2")
    a("s_sub_u32 s3, s3, 40")
    a(f"s_mov_b32 s6, {KA['ssm_k']}")
    a.label("L_prep_t2")
    a("s_load_dwordx2 s[8:9], s[0:1], s6")
    a("s_lshl_b32 s3, s3, 16")
    a("v_lshlrev_b32 v1, 4, v0")
    a(f"s_mov_b32 s10, {2048*640*2}")
    a("s_mov_b32 s11, 0x00020000")
    a("s_waitcnt lgkmcnt(0)")
    for q in range(8):
        a(f"buffer_load_dwordx4 v[{8+4*q}:{11+4*q}], v1, s[8:11], s3 offen")
        a("s_add_u32 s3, s3, 8192")
    a.label("L_prep_end")
    a.end(K, 128)
    a.launch(K, 424, 512, 0)

def gen_conv():
    K = "conv_kernel"
    CS = 4160
    UOFF = 8 * CS
    LDS = UOFF + 95 * 80
    a.begin(K)
    a("s_cmp_ge_u32 s2, 640")
    a("s_cbranch_scc1 L_conv_end")
    a.code_pf(["lnx0_kernel"], 1, 108)
    a(f"s_load_dwordx4 s[24:27], s[0:1], {KA['ssm_k']}")
    a(f"s_load_dwordx2 s[4:5], s[0:1], {KA['ws']}")
    a(f"s_load_dwordx2 s[36:37], s[0:1], {KA['w_sp']}")
    a("s_lshl_b32 s3, s2, 12")
    a("s_waitcnt lgkmcnt(0)")
    a("s_add_u32 s24, s24, s3")
    a("s_addc_u32 s25, s25, 0")
    a.srd(8, 24, 25, 4096)
    a(f"s_mul_i32 s3, s2, {L.TS}")
    a("s_add_u32 s4, s4, s3")
    a("s_addc_u32 s5, s5, 0")
    a.srd(12, 4, 5, 4096, L.URT)
    a.srd(16, 4, 5, 4096, L.YT)
    a("s_and_b32 s6, s2, 0xfffffffe")
    a("s_lshl_b32 s6, s6, 1")
    a("s_load_dword s28, s[26:27], s6")
    a("v_lshlrev_b32 v2, 4, v0")
    a("buffer_load_dwordx4 v[48:51], v2, s[12:15], 0 offen")
    a("v_subrev_u32 v3, 80, v2")
    a("v_subrev_u32 v4, 64, v2")
    a("buffer_load_dwordx4 v[16:19], v3, s[8:11], 0 offen")
    a("buffer_load_dwordx4 v[20:23], v4, s[8:11], 0 offen")
    a("v_add_u32 v7, 4016, v2")
    a("buffer_load_dwordx4 v[56:59], v7, s[8:11], 0 offen")
    a("buffer_load_dwordx4 v[60:63], v7, s[8:11], 0 offen offset:16")
    a(f"s_mov_b32 s38, {2048*2048*2}")
    a("s_mov_b32 s39, 0x00020000")
    a("s_lshl_b32 s3, s2, 14")
    for q in range(4):
        a(f"buffer_load_dwordx4 v[{96+4*q}:{99+4*q}], v2, s[36:39], s3 offen")
        a("s_add_u32 s3, s3, 4096")
    def hfill(addr, B):
        for i in range(6):
            a(f"v_mov_b32 v{24+i}, v{B+1+i}")
        for i in range(7):
            a(f"v_alignbit_b32 v{30+i}, v{B+1+i}, v{B+i}, 16")
        for i in range(6):
            a(f"v_alignbit_b32 v{38+i}, v{B+2+i}, v{B+1+i}, 16")
        src = {0: 30, 2: 38, 4: 32, 6: 40, 1: 24, 3: B + 2, 5: 26, 7: B + 4}
        for j in range(8):
            a(f"ds_write_b128 v{addr}, v[{src[j]}:{src[j]+3}] offset:{j*CS}")
    a("v_lshrrev_b32 v5, 2, v0")
    a("v_mul_u32_u24 v5, 80, v5")
    a("v_and_b32 v6, 3, v0")
    a("v_lshl_add_u32 v5, v6, 4, v5")
    a("v_mov_b32 v52, 0"); a("v_mov_b32 v53, 0"); a("v_mov_b32 v54, 0"); a("v_mov_b32 v55, 0")
    a("v_cmp_gt_u32 vcc, 124, v0")
    a("s_and_saveexec_b64 s[30:31], vcc")
    a(f"ds_write_b128 v5, v[52:55] offset:{UOFF + 64*80}")
    a("s_mov_b64 exec, s[30:31]")
    a("s_waitcnt vmcnt(8)")
    a(f"ds_write_b128 v5, v[48:51] offset:{UOFF}")
    a("s_waitcnt vmcnt(6)")
    hfill(2, 16)
    a("v_add_u32 v7, 4096, v2")
    a("s_waitcnt vmcnt(4)")
    a("v_cmp_gt_u32 vcc, 4, v0")
    a("s_and_saveexec_b64 s[30:31], vcc")
    hfill(7, 56)
    a("s_mov_b64 exec, s[30:31]")
    a("v_and_b32 v1, 31, v0")
    a("v_bfe_u32 v2, v0, 5, 1")
    a("v_lshrrev_b32 v3, 6, v0")
    a("v_and_b32 v4, 7, v1")
    a(f"v_mul_u32_u24 v4, {CS}, v4")
    a("v_lshrrev_b32 v5, 3, v1")
    a("v_add_u32 v5, v5, v2")
    a("v_lshl_add_u32 v4, v5, 4, v4")
    a("v_lshl_add_u32 v4, v3, 9, v4")
    a("v_add_u32 v4, 16, v4")
    a("v_sub_u32 v5, 31, v1")
    a("v_mul_u32_u24 v5, 80, v5")
    a("v_lshl_add_u32 v5, v2, 4, v5")
    a("v_mul_u32_u24 v6, 640, v3")
    a("v_add_u32 v5, v5, v6")
    a(f"v_add_u32 v5, {UOFF}, v5")
    for i in range(32):
        a(f"v_mov_b32 v{64+i}, 0")
    a("s_waitcnt lgkmcnt(0)")
    a("s_barrier")
    steps = [(dl, c0) for dl in range(8) for c0 in (0, 16)]
    def reads(k, base):
        dl, c0 = steps[k]
        oa = 64 * dl + (32 if c0 == 0 else 0)
        ob = 80 * dl + (32 if c0 == 0 else 0)
        a(f"ds_read_b128 v[{base}:{base+3}], v4 offset:{oa}")
        a(f"ds_read_b128 v[{base+4}:{base+7}], v5 offset:{ob+2560}")
        a(f"ds_read_b128 v[{base+8}:{base+11}], v5 offset:{ob}")
        a(f"ds_read_b128 v[{base+12}:{base+15}], v4 offset:{oa+2048}")
    reads(0, 16)
    for k in range(16):
        base = 16 + 16 * (k & 1)
        if k + 1 < 16:
            reads(k + 1, 16 + 16 * ((k + 1) & 1))
            a("s_waitcnt lgkmcnt(4)")
        else:
            a("s_waitcnt lgkmcnt(0)")
        a(f"v_mfma_f32_32x32x16_bf16 v[64:79], v[{base}:{base+3}], v[{base+4}:{base+7}], v[64:79]")
        a(f"v_mfma_f32_32x32x16_bf16 v[80:95], v[{base}:{base+3}], v[{base+8}:{base+11}], v[80:95]")
        a(f"v_mfma_f32_32x32x16_bf16 v[80:95], v[{base+12}:{base+15}], v[{base+4}:{base+7}], v[80:95]")
    a("s_nop 15")
    a("s_barrier")
    a("v_and_b32 v6, 63, v0")
    a("v_lshlrev_b32 v6, 4, v6")
    a("v_lshl_add_u32 v7, v3, 13, v6")
    for q in range(8):
        a(f"ds_write_b128 v7, v[{64+4*q}:{67+4*q}] offset:{q*1024}")
    a("v_lshl_add_u32 v8, v3, 11, v6")
    a("s_waitcnt lgkmcnt(0)")
    a("s_barrier")
    for ww in range(4):
        for qq in range(2):
            r = 16 + (ww * 2 + qq) * 4
            a(f"ds_read_b128 v[{r}:{r+3}], v8 offset:{ww*8192 + qq*1024}")
    a("v_lshrrev_b32 v9, 1, v3")
    a("v_lshlrev_b32 v9, 10, v9")
    a("v_lshl_add_u32 v9, v1, 5, v9")
    a("v_and_b32 v10, 1, v3")
    a("v_lshl_add_u32 v9, v10, 4, v9")
    a("v_lshl_add_u32 v9, v2, 2, v9")
    for qq in range(2):
        a(f"v_sub_u32 v10, {2044 - 8*qq}, v9")
        a("v_lshrrev_b32 v11, 5, v10")
        a("v_mul_u32_u24 v11, 80, v11")
        a("v_and_b32 v10, 31, v10")
        a("v_lshl_add_u32 v11, v10, 1, v11")
        a(f"ds_read_b64 v[{48+2*qq}:{49+2*qq}], v11 offset:{UOFF}")
    a("s_and_b32 s6, s2, 1")
    a("s_cmp_eq_u32 s6, 1")
    a("s_cbranch_scc1 L_conv_odd")
    a("s_lshl_b32 s28, s28, 16")
    a.label("L_conv_odd")
    a("s_and_b32 s28, s28, 0xffff0000")
    a("s_waitcnt lgkmcnt(0)")
    for qq in range(2):
        for i in range(4):
            r = 16 + qq * 4 + i
            for ww in range(1, 4):
                a(f"v_add_f32 v{r}, v{r}, v{16 + (ww*2+qq)*4 + i}")
    for qq in range(2):
        r = 16 + qq * 4
        rnd2(r, r + 1, 60); rnd2(r + 2, r + 3, 60)
        unpack(55, 54, 48 + 2 * qq)
        unpack(53, 52, 49 + 2 * qq)
        for i in range(4):
            a(f"v_mul_f32 v{52+i}, s28, v{52+i}")
        rnd2(52, 53, 60); rnd2(54, 55, 60)
        for i in range(4):
            a(f"v_add_f32 v{r+i}, v{r+i}, v{52+i}")
        a(f"v_cvt_pk_bf16_f32 v{56+2*qq}, v{r}, v{r+1}")
        a(f"v_cvt_pk_bf16_f32 v{57+2*qq}, v{r+2}, v{r+3}")
    a("v_lshlrev_b32 v9, 1, v9")
    a("buffer_store_dwordx2 v[56:57], v9, s[16:19], 0 offen")
    a("buffer_store_dwordx2 v[58:59], v9, s[16:19], 0 offen offset:16")
    a.label("L_conv_end")
    a.end(K, 112)
    a.launch(K, 640, 256, LDS)

def wave_sum(v, sdst):
    a("s_nop 1")
    for sh in (1, 2, 4, 8):
        a(f"v_add_f32_dpp v{v}, v{v}, v{v} row_shr:{sh} row_mask:0xf bank_mask:0xf bound_ctrl:0")
        a("s_nop 1")
    a(f"v_add_f32_dpp v{v}, v{v}, v{v} row_bcast:15 row_mask:0xa bank_mask:0xf")
    a("s_nop 1")
    a(f"v_add_f32_dpp v{v}, v{v}, v{v} row_bcast:31 row_mask:0xc bank_mask:0xf")
    a("s_nop 1")
    a(f"v_readlane_b32 s{sdst}, v{v}, 63")
    a("s_nop 1")

def ln_stats(xs, N, t0, smb, srinv):
    def pr(x): return f"v[{x}:{x+1}]"
    n = len(xs)
    a(f"v_pk_add_f32 {pr(t0)}, {pr(xs[0])}, {pr(xs[2])}")
    for i in range(4, n, 2):
        a(f"v_pk_add_f32 {pr(t0)}, {pr(t0)}, {pr(xs[i])}")
    a(f"v_add_f32 v{t0}, v{t0}, v{t0+1}")
    wave_sum(t0, 40)
    a(f"v_mov_b32 v{t0}, s40")
    a(f"v_mul_f32 v{t0}, {-1.0/N!r}, v{t0}")
    a(f"v_mov_b32 v{t0+1}, v{t0}")
    for i in range(0, n, 2):
        a(f"v_pk_add_f32 {pr(t0+2)}, {pr(xs[i])}, {pr(t0)}")
        if i == 0:
            a(f"v_pk_mul_f32 {pr(t0+4)}, {pr(t0+2)}, {pr(t0+2)}")
        else:
            a(f"v_pk_fma_f32 {pr(t0+4)}, {pr(t0+2)}, {pr(t0+2)}, {pr(t0+4)}")
    a(f"v_add_f32 v{t0+2}, v{t0+4}, v{t0+5}")
    wave_sum(t0 + 2, 41)
    a(f"v_mov_b32 v{t0+1}, s41")
    a(f"v_mul_f32 v{t0+1}, {1.0/N!r}, v{t0+1}")
    rnd2(t0, t0 + 1, t0 + 2)
    a(f"v_add_f32 v{t0+1}, 0x3727c5ac, v{t0+1}")
    rnd2(t0 + 1, t0 + 1, t0 + 2)
    a(f"v_sqrt_f32 v{t0+1}, v{t0+1}")
    a("s_nop 0")
    rnd2(t0 + 1, t0 + 1, t0 + 2)
    a(f"v_rcp_f32 v{t0+2}, v{t0+1}")
    a(f"v_mov_b32 v{t0+1}, v{t0}")
    a(f"v_mov_b32 v{t0+3}, v{t0+2}")

def ln_apply(xs, dst, t0, tmp):
    def pr(x): return f"v[{x}:{x+1}]"
    for i in range(0, len(xs), 2):
        a(f"v_pk_add_f32 {pr(dst[i])}, {pr(xs[i])}, {pr(t0)}")
        rnd2(dst[i], dst[i + 1], tmp)
        a(f"v_pk_mul_f32 {pr(dst[i])}, {pr(dst[i])}, {pr(t0+2)}")
        rnd2(dst[i], dst[i + 1], tmp)

def gen_lnx(K, first):
    a.begin(K)
    E = f"L_{K}_end"
    def pr(x): return f"v[{x}:{x+1}]"
    a("s_cmp_ge_u32 s2, 256")
    a(f"s_cbranch_scc1 {E}")
    a.code_pf(["gemm1_0_kernel"] if first or not GDIAG else ["gemm1_1_kernel"], 1, 92)
    a(f"s_load_dwordx2 s[4:5], s[0:1], {KA['ws']}")
    a(f"s_load_dwordx2 s[6:7], s[0:1], {KA['A_q']}")
    a("s_and_b32 s3, s2, 7")
    a("s_lshl_b32 s3, s3, 5")
    a("s_lshr_b32 s2, s2, 3")
    a("s_add_u32 s2, s2, s3")
    a("v_and_b32 v1, 63, v0")
    a("v_lshrrev_b32 v2, 6, v0")
    a("s_lshl_b32 s3, s2, 3")
    a("s_lshl_b32 s24, s2, 4")
    a(f"v_mul_u32_u24 v3, {L.TS}, v0")
    a(f"v_add_u32 v4, {512*L.TS}, v3")
    a("v_add_u32 v5, s3, v2")
    a("v_mul_u32_u24 v8, 1280, v5")
    a("v_lshl_add_u32 v6, v1, 4, v8")
    a("v_lshl_add_u32 v8, v1, 2, v8")
    a("s_waitcnt lgkmcnt(0)")
    if first:
        a.srd(8, 6, 7, 2048 * 640 * 2)
        a.srd(12, 4, 5, 640 * L.TS, L.YT)
    else:
        a.srd(8, 4, 5, 2048 * 640 * 2, L.X2)
        a.srd(12, 4, 5, 2048 * 640 * 2, L.YR)
    a("buffer_load_dwordx4 v[48:51], v6, s[8:11], 0 offen")
    a("buffer_load_dword v52, v8, s[8:11], 0 offen offset:1024")
    if first:
        a("buffer_load_dwordx4 v[40:43], v3, s[12:15], s24 offen")
        a("buffer_load_dwordx4 v[44:47], v4, s[12:15], s24 offen")
        a.srd(24, 4, 5, 2048 * 640 * 2, L.YR)
    else:
        a("buffer_load_dwordx4 v[40:43], v6, s[12:15], 0 offen")
        a("buffer_load_dword v44, v8, s[12:15], 0 offen offset:1024")
    a.srd(16, 4, 5, 2048 * 640 * 2, L.X1)
    a.srd(20, 4, 5, 2048 * 640 * 2, L.XNB)
    Y = list(range(80, 90))
    X = list(range(60, 70))
    Q = list(range(100, 110))
    a("s_waitcnt vmcnt(2)")
    for i in range(5):
        unpack(X[2 * i], X[2 * i + 1], 48 + i)
    ln_stats(X, 640, 10, 42, 43)
    ln_apply(X, Q, 10, 16)
    if first:
        a("v_lshrrev_b32 v7, 3, v0")
        a("v_lshlrev_b32 v7, 2, v7")
        a("v_lshl_add_u32 v7, v0, 4, v7")
        a("s_waitcnt vmcnt(0)")
        a("ds_write2_b32 v7, v40, v41 offset0:0 offset1:1")
        a("ds_write2_b32 v7, v42, v43 offset0:2 offset1:3")
        a("v_cmp_gt_u32 vcc, 128, v0")
        a("s_and_saveexec_b64 s[30:31], vcc")
        a(f"v_add_u32 v9, {512*16 + 64*4}, v7")
        a("ds_write2_b32 v9, v44, v45 offset0:0 offset1:1")
        a("ds_write2_b32 v9, v46, v47 offset0:2 offset1:3")
        a("s_mov_b64 exec, s[30:31]")
        a("v_mul_u32_u24 v7, 132, v1")
        a("v_lshl_add_u32 v7, v2, 1, v7")
        a("v_lshrrev_b32 v9, 2, v1")
        a("v_lshlrev_b32 v9, 2, v9")
        a("v_lshl_add_u32 v9, v1, 5, v9")
        a("v_lshl_add_u32 v9, v2, 1, v9")
        a("s_waitcnt lgkmcnt(0)")
        a("s_barrier")
        for i in range(8):
            a(f"ds_read_u16_d16_hi v{Y[i]}, v7 offset:{i*16}")
        for i in range(2):
            a(f"ds_read_u16_d16_hi v{Y[8+i]}, v9 offset:{512*16 + 64*4 + i*16}")
        a("s_waitcnt lgkmcnt(0)")
        for i in range(10):
            a(f"v_and_b32 v{Y[i]}, 0xffff0000, v{Y[i]}")
        for i in range(5):
            a(f"v_cvt_pk_bf16_f32 v{112+i}, v{Y[2*i]}, v{Y[2*i+1]}")
        a("buffer_store_dwordx4 v[112:115], v6, s[24:27], 0 offen")
        a("buffer_store_dword v116, v8, s[24:27], 0 offen offset:1024")
    else:
        a("s_waitcnt vmcnt(0)")
        for i in range(5):
            unpack(Y[2 * i], Y[2 * i + 1], 40 + i)
    for i in range(0, 10, 2):
        a(f"v_pk_mul_f32 {pr(Q[i])}, {pr(Q[i])}, {pr(Y[i])}")
        rnd2(Q[i], Q[i + 1], 16)
        a(f"v_pk_add_f32 {pr(X[i])}, {pr(X[i])}, {pr(Q[i])}")
        a(f"v_cvt_pk_bf16_f32 v{120+i//2}, v{X[i]}, v{X[i+1]}")
        unpack(X[i], X[i + 1], 120 + i // 2)
    a("buffer_store_dwordx4 v[120:123], v6, s[16:19], 0 offen")
    a("buffer_store_dword v124, v8, s[16:19], 0 offen offset:1024")
    ln_stats(X, 640, 10, 42, 43)
    ln_apply(X, Q, 10, 16)
    for i in range(0, 10, 2):
        a(f"v_cvt_pk_bf16_f32 v{128+i//2}, v{Q[i]}, v{Q[i+1]}")
    a("v_lshlrev_b32 v7, 15, v1")
    a("v_lshl_add_u32 v7, v5, 4, v7")
    a("buffer_store_dwordx4 v[128:131], v7, s[20:23], 0 offen")
    a("v_lshrrev_b32 v7, 2, v1")
    a("v_lshlrev_b32 v7, 15, v7")
    a("v_lshl_add_u32 v7, v5, 4, v7")
    a("v_and_b32 v9, 3, v1")
    a("v_lshl_add_u32 v7, v9, 2, v7")
    a("v_add_u32 v7, 0x200000, v7")
    a("buffer_store_dword v132, v7, s[20:23], 0 offen")
    a.label(E)
    a.end(K, 136)
    a.launch(K, 256, 512, (640 * 16 + 80 * 4) if first else 0)

def gen_lnz(K):
    a.begin(K)
    E = f"L_{K}_end"
    a("s_cmp_ge_u32 s2, 256")
    a(f"s_cbranch_scc1 {E}")
    a.code_pf([K.replace("lnz", "gemm2_")], 1, 92)
    a(f"s_load_dwordx2 s[4:5], s[0:1], {KA['ws']}")
    a("s_and_b32 s3, s2, 7")
    a("s_lshl_b32 s3, s3, 5")
    a("s_lshr_b32 s2, s2, 3")
    a("s_add_u32 s2, s2, s3")
    a("v_and_b32 v1, 63, v0")
    a("v_lshrrev_b32 v2, 6, v0")
    a("s_lshl_b32 s3, s2, 3")
    a("v_add_u32 v5, s3, v2")
    a("v_mul_u32_u24 v8, 1536, v5")
    a("v_lshl_add_u32 v6, v1, 4, v8")
    a("v_lshl_add_u32 v8, v1, 3, v8")
    a("s_waitcnt lgkmcnt(0)")
    a.srd(8, 4, 5, 2048 * 768 * 2, L.Z2)
    a("buffer_load_dwordx4 v[48:51], v6, s[8:11], 0 offen")
    a("buffer_load_dwordx2 v[52:53], v8, s[8:11], 0 offen offset:1024")
    a.srd(12, 4, 5, 2048 * 768 * 2, L.Z2NB)
    a("v_mul_u32_u24 v7, 132, v1")
    a("v_lshl_add_u32 v7, v2, 1, v7")
    a("v_lshrrev_b32 v9, 1, v1")
    a("v_lshlrev_b32 v9, 2, v9")
    a("v_lshl_add_u32 v9, v1, 6, v9")
    a("v_lshl_add_u32 v9, v2, 1, v9")
    a("s_waitcnt vmcnt(0)")
    X = list(range(60, 72))
    for i in range(6):
        unpack(X[2 * i], X[2 * i + 1], 48 + i)
    ln_stats(X, 768, 10, 42, 43)
    Q = list(range(100, 112))
    ln_apply(X, Q, 10, 16)
    for i in range(8):
        a(f"ds_write_b16_d16_hi v7, v{Q[i]} offset:{i*16}")
    for i in range(4):
        a(f"ds_write_b16_d16_hi v9, v{Q[8+i]} offset:{64*132 + i*16}")
    a("v_lshrrev_b32 v7, 3, v0")
    a("v_lshlrev_b32 v7, 2, v7")
    a("v_lshl_add_u32 v7, v0, 4, v7")
    a("s_mul_i32 s24, s2, 12288")
    a("v_lshlrev_b32 v8, 4, v0")
    a("s_waitcnt lgkmcnt(0)")
    a("s_barrier")
    a("ds_read2_b32 v[20:21], v7 offset0:0 offset1:1")
    a("ds_read2_b32 v[22:23], v7 offset0:2 offset1:3")
    a("v_cmp_gt_u32 vcc, 256, v0")
    a("s_and_saveexec_b64 s[30:31], vcc")
    a(f"v_add_u32 v7, {64*132}, v7")
    a("ds_read2_b32 v[24:25], v7 offset0:0 offset1:1")
    a("ds_read2_b32 v[26:27], v7 offset0:2 offset1:3")
    a("s_waitcnt lgkmcnt(0)")
    a("v_add_u32 v10, 8192, v8")
    a("buffer_store_dwordx4 v[24:27], v10, s[12:15], s24 offen")
    a("s_mov_b64 exec, s[30:31]")
    a("s_waitcnt lgkmcnt(0)")
    a("buffer_store_dwordx4 v[20:23], v8, s[12:15], s24 offen")
    a.label(E)
    a.end(K, 120)
    a.launch(K, 256, 512, 96 * 132)

def main():
    import gemm
    gen_prep()
    gen_conv()
    for layer in range(2):
        sfx = str(layer) if (GDIAG or layer == 0) else None
        gen_lnx(f"lnx{layer}_kernel", layer == 0)
        if sfx is not None:
            n1 = f"gemm1_{sfx}_kernel"; l1 = gemm.gen_gemm1(a, n1)
        a.launch(n1, 256, 512, l1)
        if os.environ.get("DUP") and layer == 0:
            n1b = "gemm1_dup_kernel"; gemm.gen_gemm1(a, n1b); a.launch(n1b, 256, 512, l1)
        if sfx is not None:
            nz = f"lnz{sfx}_kernel"; gen_lnz(nz)
        else:
            a.launch(nz, 256, 512, 96 * 132)
        if sfx is not None:
            n2 = f"gemm2_{sfx}_kernel"; l2 = gemm.gen_gemm2(a, n2)
        a.launch(n2, 256, 512, l2)
        if os.environ.get("DUP") and layer == 0:
            n2b = "gemm2_dup_kernel"; gemm.gen_gemm2(a, n2b); a.launch(n2b, 256, 512, l2)
        n3 = f"gemm3_{layer}_kernel"; l3 = gemm.gen_gemm3(a, n3, layer == 1); a.launch(n3, 256, 512, l3)
        if os.environ.get("DUP") and layer == 0:
            n3b = "gemm3_dup_kernel"; gemm.gen_gemm3(a, n3b, False); a.launch(n3b, 256, 512, l3)
    if os.environ.get("DUMMY"):
        a.begin("nop_kernel"); a.end("nop_kernel", 8)
        for _ in range(int(os.environ["DUMMY"])):
            a.launch("nop_kernel", 8, 64, 0)
    open(sys.argv[1] if len(sys.argv) > 1 else f"cdna_kernels/{NAME}.s", "w").write(a.text())

if __name__ == "__main__":
    import gen
    gen.main()
```

```python
import sys
import layout as L
import os
GDIAG = bool(os.environ.get('GDIAG'))

NAME = "interleave_layers__ssm_conv_h3__mixer_gmlp__prompt"
KA = dict(A_q=0, A_k=8, A_v=16, shift_k=24, ssm_k=32, ssm_D=40, B_x=48, w_in=56, w_sp=64, b_sp=72, w_out=80,
          out=88, dbg=96, ws=104)

class Asm:
    def __init__(self):
        self.lines = []
        self.kernels = []
        self.launches = []
        self.uid = 0
        self.wgreg = 2
        self.next_of = {}
    def __call__(self, s):
        for ln in s.strip("\n").split("\n"):
            ln = ln.strip()
            if ln:
                self.lines.append("    " + ln)
    def label(self, l):
        self.lines.append(l + ":")
    def newlabel(self, base):
        self.uid += 1
        return f"L_{base}_{self.uid}"
    def begin(self, label):
        self.lines += [f".globl {label}", ".p2align 8", f".type {label},@function", f"{label}:"]
        if GDIAG:
            self("s_memrealtime s[96:97]")
            self("s_mov_b32 s95, s2")
    def end(self, label, vgpr, sgpr=102):
        if GDIAG:
            idx = len(self.kernels)
            self("s_mov_b64 exec, -1")
            self("s_waitcnt vmcnt(0) lgkmcnt(0)")
            self("s_memrealtime s[98:99]")
            self("s_load_dwordx2 s[88:89], s[0:1], 104")
            self("s_waitcnt lgkmcnt(0)")
            self(f"s_add_u32 s88, s88, {(80 << 20) + idx * (1 << 20)}")
            self("s_addc_u32 s89, s89, 0")
            self(f"s_mov_b32 s90, {1 << 20}")
            self("s_mov_b32 s91, 0x00020000")
            self("s_lshl_b32 s95, s95, 8")
            self("v_lshrrev_b32 v1, 6, v0")
            self("v_lshlrev_b32 v1, 4, v1")
            self("v_add_u32 v1, s95, v1")
            self("v_and_b32 v2, 63, v0")
            self("v_cmp_eq_u32 vcc, 0, v2")
            self("s_and_saveexec_b64 s[92:93], vcc")
            self("v_mov_b32 v4, s96"); self("v_mov_b32 v5, s97"); self("v_mov_b32 v6, s98"); self("v_mov_b32 v7, s99")
            self("buffer_store_dwordx4 v[4:7], v1, s[88:91], 0 offen")
            vgpr = max(vgpr, 8)
        self.lines.append("    s_endpgm")
        self.kernels.append((label, vgpr, sgpr))
    def launch(self, label, grid, block, lds):
        self.launches.append((label, grid, block, lds))
    def srd(self, d, base_lo, base_hi, nbytes, add=0):
        if add:
            self(f"s_add_u32 s{d}, s{base_lo}, {add}")
            self(f"s_addc_u32 s{d+1}, s{base_hi}, 0")
        else:
            self(f"s_mov_b32 s{d}, s{base_lo}")
            self(f"s_mov_b32 s{d+1}, s{base_hi}")
        self(f"s_mov_b32 s{d+2}, {nbytes}")
        self(f"s_mov_b32 s{d+3}, 0x00020000")
    def code_pf(self, nxts, vaddr, vdst):
        if os.environ.get("NOCPF") or not nxts:
            return
        self.uid += 1
        u = self.uid
        self(f"s_cmp_ge_u32 s2, 8")
        self(f"s_cbranch_scc1 L_cpf_{u}")
        self(f"v_lshlrev_b32 v{vaddr}, 4, v0")
        for i, nxt in enumerate(nxts):
            self("s_getpc_b64 s[100:101]")
            self.label(f"L_cpfpc_{u}_{i}")
            self(f"s_add_u32 s100, s100, {nxt}-L_cpfpc_{u}_{i}")
            self(f"s_addc_u32 s101, s101, ({nxt}-L_cpfpc_{u}_{i})>>32")
            self(f"v_cmp_gt_u32 vcc, L_text_end-{nxt}-16, v{vaddr}")
            self("s_and_saveexec_b64 s[98:99], vcc")
            self(f"global_load_dwordx4 v[{vdst}:{vdst+3}], v{vaddr}, s[100:101]")
            self("s_mov_b64 exec, s[98:99]")
        self.label(f"L_cpf_{u}")
    def text(self):
        hdr = open(f"cdna_kernels/{NAME}.s.ref").read().split("; Override launch geometry")[0]
        out = [hdr.rstrip("\n")]
        for (label, g, b, lds) in self.launches:
            out.append(f"; @launch kernel={label} grid=({g},1,1) block=({b},1,1) lds={lds}")
        out.append('.amdgcn_target "amdgcn-amd-amdhsa--gfx950"')
        out.append(".text")
        out += self.lines
        out.append("L_text_end:")
        out.append('.section .rodata,"a"')
        for (label, vgpr, sgpr) in self.kernels:
            acc = (vgpr + 3) // 4 * 4
            out += [".p2align 6", f".amdhsa_kernel {label}",
                    f"  .amdhsa_next_free_vgpr {vgpr}", f"  .amdhsa_next_free_sgpr {sgpr}",
                    f"  .amdhsa_accum_offset {acc}", "  .amdhsa_group_segment_fixed_size 0",
                    "  .amdhsa_kernarg_size 112", "  .amdhsa_user_sgpr_count 2",
                    "  .amdhsa_user_sgpr_kernarg_segment_ptr 1", "  .amdhsa_system_sgpr_workgroup_id_x 1",
                    ".end_amdhsa_kernel"]
        return "\n".join(out) + "\n"

a = Asm()

def unpack(dst_lo, dst_hi, src):
    a(f"v_lshlrev_b32 v{dst_lo}, 16, v{src}")
    a(f"v_and_b32 v{dst_hi}, 0xffff0000, v{src}")

def rnd2(x0, x1, tmp):
    a(f"v_cvt_pk_bf16_f32 v{tmp}, v{x0}, v{x1}")
    unpack(x0, x1, tmp)

def gen_prep():
    K = "prep_kernel"
    a.begin(K)
    a("s_cmp_ge_u32 s2, 200")
    a("s_cbranch_scc1 L_prep_end")
    a("s_cmp_ge_u32 s2, 160")
    a("s_cbranch_scc1 L_prep_touch")
    a(f"s_load_dwordx2 s[4:5], s[0:1], {KA['ws']}")
    a("s_mov_b32 s30, 0x05040100")
    a("s_mov_b32 s31, 0x07060302")
    a(f"s_load_dwordx4 s[24:27], s[0:1], {KA['A_k']}")
    a(f"s_load_dwordx2 s[28:29], s[0:1], {KA['shift_k']}")
    a("s_mul_i32 s3, s2, 52429")
    a("s_lshr_b32 s3, s3, 18")
    a("s_mul_i32 s6, s3, 5")
    a("s_sub_u32 s6, s2, s6")
    a("s_lshl_b32 s6, s6, 6")
    a("s_lshl_b32 s3, s3, 3")
    a("v_and_b32 v1, 63, v0")
    a("v_add_u32 v1, s6, v1")
    a("v_lshrrev_b32 v2, 6, v0")
    a("v_add_u32 v2, s3, v2")
    a("v_mul_u32_u24 v3, 10240, v2")
    a("v_lshl_add_u32 v3, v1, 2, v3")
    a("v_lshlrev_b32 v4, 4, v1")
    a("s_waitcnt lgkmcnt(0)")
    a.srd(8, 24, 25, 2048 * 640 * 2)
    a.srd(12, 26, 27, 2048 * 640 * 2)
    a.srd(16, 28, 29, 640 * 4 * 2)
    a.srd(20, 4, 5, 640 * L.TS, L.URT)
    a("buffer_load_dwordx4 v[48:51], v4, s[16:19], 0 offen")
    for i in range(3):
        off = (i - 3) * 1280
        a(f"v_add_u32 v4, {off & 0xffffffff}, v3")
        a(f"buffer_load_dword v{10+i}, v4, s[8:11], 0 offen")
    a("v_add_u32 v4, 5120, v3")
    for i in range(8):
        a(f"buffer_load_dword v{13+i}, v{3 if i < 4 else 4}, s[8:11], 0 offen offset:{(i & 3) * 1280}")
    for i in range(8):
        a(f"buffer_load_dword v{30+i}, v{3 if i < 4 else 4}, s[12:15], 0 offen offset:{(i & 3) * 1280}")
    a("s_waitcnt vmcnt(8)")
    unpack(92, 94, 48); unpack(96, 98, 49); unpack(93, 95, 50); unpack(97, 99, 51)
    for i in range(11):
        unpack(52 + 2 * i, 53 + 2 * i, 10 + i)
    a("s_waitcnt vmcnt(0)")
    def pr(x): return f"v[{x}:{x+1}]"
    for i in range(8):
        a(f"v_pk_mul_f32 {pr(100)}, {pr(52+2*i)}, {pr(98)}")
        rnd2(100, 101, 104)
        for j in (2, 1, 0):
            ki = i + 3 - j
            a(f"v_pk_mul_f32 {pr(102)}, {pr(52+2*ki)}, {pr(92+2*j)}")
            rnd2(102, 103, 104)
            a(f"v_pk_add_f32 {pr(100)}, {pr(100)}, {pr(102)}")
            rnd2(100, 101, 104)
        unpack(102, 103, 30 + i)
        a(f"v_pk_mul_f32 {pr(100)}, {pr(100)}, {pr(102)}")
        a(f"v_cvt_pk_bf16_f32 v{110+i}, v100, v101")
    for m in range(4):
        a(f"v_perm_b32 v{120+m}, v{110+6-2*m}, v{110+7-2*m}, s30")
        a(f"v_perm_b32 v{124+m}, v{110+6-2*m}, v{110+7-2*m}, s31")
    a(f"v_mul_u32_u24 v4, {2*L.TS}, v1")
    a("v_lshlrev_b32 v5, 4, v2")
    a("v_sub_u32 v4, v4, v5")
    a("v_add_u32 v4, 4080, v4")
    a(f"v_add_u32 v5, {L.TS}, v4")
    a("buffer_store_dwordx4 v[120:123], v4, s[20:23], 0 offen")
    a("buffer_store_dwordx4 v[124:127], v5, s[20:23], 0 offen")
    a("s_branch L_prep_end")
    a.label("L_prep_touch")
    if os.environ.get("CODEPF", "1") == "1":
        a("s_cmp_ge_u32 s2, 176")
        a("s_cbranch_scc1 L_prep_t1")
        a("s_getpc_b64 s[12:13]")
        a.label("L_prep_pc")
        a("s_add_u32 s12, s12, conv_kernel-L_prep_pc")
        a("s_addc_u32 s13, s13, 0")
        a("v_lshlrev_b32 v1, 4, v0")
        a("s_mov_b32 s14, 0")
        a.label("L_prep_cl")
        a("v_cmp_gt_u32 vcc, L_text_end-conv_kernel-16, v1")
        a("s_and_saveexec_b64 s[16:17], vcc")
        a("s_cbranch_execz L_prep_cd")
        a("global_load_dwordx4 v[48:51], v1, s[12:13]")
        a("v_add_u32 v1, 8192, v1")
        a("s_branch L_prep_cl")
        a.label("L_prep_cd")
        a("s_mov_b64 exec, -1")
        a.label("L_prep_t1")
    a("s_sub_u32 s3, s2, 160")
    a(f"s_load_dwordx2 s[8:9], s[0:1], {KA['ssm_k']}")
    a("s_lshl_b32 s3, s3, 16")
    a("v_lshlrev_b32 v1, 4, v0")
    a(f"s_mov_b32 s10, {2048*640*2}")
    a("s_mov_b32 s11, 0x00020000")
    a("s_waitcnt lgkmcnt(0)")
    for q in range(8):
        a(f"buffer_load_dwordx4 v[{8+4*q}:{11+4*q}], v1, s[8:11], s3 offen")
        a("s_add_u32 s3, s3, 8192")
    a.label("L_prep_end")
    a.end(K, 128)
    a.launch(K, 200, 512, 0)

def gen_conv():
    K = "conv_kernel"
    CS = 4160
    UOFF = 8 * CS
    LDS = UOFF + 95 * 80
    a.begin(K)
    a("s_cmp_ge_u32 s2, 1040")
    a("s_cbranch_scc1 L_conv_end")
    a("s_cmp_ge_u32 s2, 640")
    a("s_cbranch_scc1 L_cw_w")
    a.code_pf(["lnx0_kernel"], 1, 108)
    a(f"s_load_dwordx4 s[24:27], s[0:1], {KA['ssm_k']}")
    a(f"s_load_dwordx2 s[4:5], s[0:1], {KA['ws']}")
    a(f"s_load_dwordx2 s[36:37], s[0:1], {KA['w_sp']}")
    a("s_lshl_b32 s3, s2, 12")
    a("s_waitcnt lgkmcnt(0)")
    a("s_add_u32 s24, s24, s3")
    a("s_addc_u32 s25, s25, 0")
    a.srd(8, 24, 25, 4096)
    a(f"s_mul_i32 s3, s2, {L.TS}")
    a("s_add_u32 s4, s4, s3")
    a("s_addc_u32 s5, s5, 0")
    a.srd(12, 4, 5, 4096, L.URT)
    a.srd(16, 4, 5, 4096, L.YT)
    a("s_and_b32 s6, s2, 0xfffffffe")
    a("s_lshl_b32 s6, s6, 1")
    a("s_load_dword s28, s[26:27], s6")
    a("v_lshlrev_b32 v2, 4, v0")
    a("buffer_load_dwordx4 v[48:51], v2, s[12:15], 0 offen")
    a("v_subrev_u32 v3, 80, v2")
    a("v_subrev_u32 v4, 64, v2")
    a("buffer_load_dwordx4 v[16:19], v3, s[8:11], 0 offen")
    a("buffer_load_dwordx4 v[20:23], v4, s[8:11], 0 offen")
    a("v_add_u32 v7, 4016, v2")
    a("buffer_load_dwordx4 v[56:59], v7, s[8:11], 0 offen")
    a("buffer_load_dwordx4 v[60:63], v7, s[8:11], 0 offen offset:16")
    a(f"s_mov_b32 s38, {2048*2048*2}")
    a("s_mov_b32 s39, 0x00020000")
    a("s_lshl_b32 s3, s2, 14")
    for q in range(4):
        a(f"buffer_load_dwordx4 v[{96+4*q}:{99+4*q}], v2, s[36:39], s3 offen")
        a("s_add_u32 s3, s3, 4096")
    def hfill(addr, B):
        for i in range(6):
            a(f"v_mov_b32 v{24+i}, v{B+1+i}")
        for i in range(7):
            a(f"v_alignbit_b32 v{30+i}, v{B+1+i}, v{B+i}, 16")
        for i in range(6):
            a(f"v_alignbit_b32 v{38+i}, v{B+2+i}, v{B+1+i}, 16")
        src = {0: 30, 2: 38, 4: 32, 6: 40, 1: 24, 3: B + 2, 5: 26, 7: B + 4}
        for j in range(8):
            a(f"ds_write_b128 v{addr}, v[{src[j]}:{src[j]+3}] offset:{j*CS}")
    a("v_lshrrev_b32 v5, 2, v0")
    a("v_mul_u32_u24 v5, 80, v5")
    a("v_and_b32 v6, 3, v0")
    a("v_lshl_add_u32 v5, v6, 4, v5")
    a("v_mov_b32 v52, 0"); a("v_mov_b32 v53, 0"); a("v_mov_b32 v54, 0"); a("v_mov_b32 v55, 0")
    a("v_cmp_gt_u32 vcc, 124, v0")
    a("s_and_saveexec_b64 s[30:31], vcc")
    a(f"ds_write_b128 v5, v[52:55] offset:{UOFF + 64*80}")
    a("s_mov_b64 exec, s[30:31]")
    a("s_waitcnt vmcnt(8)")
    a(f"ds_write_b128 v5, v[48:51] offset:{UOFF}")
    a("s_waitcnt vmcnt(6)")
    hfill(2, 16)
    a("v_add_u32 v7, 4096, v2")
    a("s_waitcnt vmcnt(4)")
    a("v_cmp_gt_u32 vcc, 4, v0")
    a("s_and_saveexec_b64 s[30:31], vcc")
    hfill(7, 56)
    a("s_mov_b64 exec, s[30:31]")
    a("v_and_b32 v1, 31, v0")
    a("v_bfe_u32 v2, v0, 5, 1")
    a("v_lshrrev_b32 v3, 6, v0")
    a("v_and_b32 v4, 7, v1")
    a(f"v_mul_u32_u24 v4, {CS}, v4")
    a("v_lshrrev_b32 v5, 3, v1")
    a("v_add_u32 v5, v5, v2")
    a("v_lshl_add_u32 v4, v5, 4, v4")
    a("v_lshl_add_u32 v4, v3, 9, v4")
    a("v_add_u32 v4, 16, v4")
    a("v_sub_u32 v5, 31, v1")
    a("v_mul_u32_u24 v5, 80, v5")
    a("v_lshl_add_u32 v5, v2, 4, v5")
    a("v_mul_u32_u24 v6, 640, v3")
    a("v_add_u32 v5, v5, v6")
    a(f"v_add_u32 v5, {UOFF}, v5")
    for i in range(32):
        a(f"v_mov_b32 v{64+i}, 0")
    a("s_waitcnt lgkmcnt(0)")
    a("s_barrier")
    steps = [(dl, c0) for dl in range(8) for c0 in (0, 16)]
    def reads(k, base):
        dl, c0 = steps[k]
        oa = 64 * dl + (32 if c0 == 0 else 0)
        ob = 80 * dl + (32 if c0 == 0 else 0)
        a(f"ds_read_b128 v[{base}:{base+3}], v4 offset:{oa}")
        a(f"ds_read_b128 v[{base+4}:{base+7}], v5 offset:{ob+2560}")
        a(f"ds_read_b128 v[{base+8}:{base+11}], v5 offset:{ob}")
        a(f"ds_read_b128 v[{base+12}:{base+15}], v4 offset:{oa+2048}")
    reads(0, 16)
    for k in range(16):
        base = 16 + 16 * (k & 1)
        if k + 1 < 16:
            reads(k + 1, 16 + 16 * ((k + 1) & 1))
            a("s_waitcnt lgkmcnt(4)")
        else:
            a("s_waitcnt lgkmcnt(0)")
        a(f"v_mfma_f32_32x32x16_bf16 v[64:79], v[{base}:{base+3}], v[{base+4}:{base+7}], v[64:79]")
        a(f"v_mfma_f32_32x32x16_bf16 v[80:95], v[{base}:{base+3}], v[{base+8}:{base+11}], v[80:95]")
        a(f"v_mfma_f32_32x32x16_bf16 v[80:95], v[{base+12}:{base+15}], v[{base+4}:{base+7}], v[80:95]")
    a("s_nop 15")
    a("s_barrier")
    a("v_and_b32 v6, 63, v0")
    a("v_lshlrev_b32 v6, 4, v6")
    a("v_lshl_add_u32 v7, v3, 13, v6")
    for q in range(8):
        a(f"ds_write_b128 v7, v[{64+4*q}:{67+4*q}] offset:{q*1024}")
    a("v_lshl_add_u32 v8, v3, 11, v6")
    a("s_waitcnt lgkmcnt(0)")
    a("s_barrier")
    for ww in range(4):
        for qq in range(2):
            r = 16 + (ww * 2 + qq) * 4
            a(f"ds_read_b128 v[{r}:{r+3}], v8 offset:{ww*8192 + qq*1024}")
    a("v_lshrrev_b32 v9, 1, v3")
    a("v_lshlrev_b32 v9, 10, v9")
    a("v_lshl_add_u32 v9, v1, 5, v9")
    a("v_and_b32 v10, 1, v3")
    a("v_lshl_add_u32 v9, v10, 4, v9")
    a("v_lshl_add_u32 v9, v2, 2, v9")
    for qq in range(2):
        a(f"v_sub_u32 v10, {2044 - 8*qq}, v9")
        a("v_lshrrev_b32 v11, 5, v10")
        a("v_mul_u32_u24 v11, 80, v11")
        a("v_and_b32 v10, 31, v10")
        a("v_lshl_add_u32 v11, v10, 1, v11")
        a(f"ds_read_b64 v[{48+2*qq}:{49+2*qq}], v11 offset:{UOFF}")
    a("s_and_b32 s6, s2, 1")
    a("s_cmp_eq_u32 s6, 1")
    a("s_cbranch_scc1 L_conv_odd")
    a("s_lshl_b32 s28, s28, 16")
    a.label("L_conv_odd")
    a("s_and_b32 s28, s28, 0xffff0000")
    a("s_waitcnt lgkmcnt(0)")
    for qq in range(2):
        for i in range(4):
            r = 16 + qq * 4 + i
            for ww in range(1, 4):
                a(f"v_add_f32 v{r}, v{r}, v{16 + (ww*2+qq)*4 + i}")
    for qq in range(2):
        r = 16 + qq * 4
        rnd2(r, r + 1, 60); rnd2(r + 2, r + 3, 60)
        unpack(55, 54, 48 + 2 * qq)
        unpack(53, 52, 49 + 2 * qq)
        for i in range(4):
            a(f"v_mul_f32 v{52+i}, s28, v{52+i}")
        rnd2(52, 53, 60); rnd2(54, 55, 60)
        for i in range(4):
            a(f"v_add_f32 v{r+i}, v{r+i}, v{52+i}")
        a(f"v_cvt_pk_bf16_f32 v{56+2*qq}, v{r}, v{r+1}")
        a(f"v_cvt_pk_bf16_f32 v{57+2*qq}, v{r+2}, v{r+3}")
    a("v_lshlrev_b32 v9, 1, v9")
    a("buffer_store_dwordx2 v[56:57], v9, s[16:19], 0 offen")
    a("buffer_store_dwordx2 v[58:59], v9, s[16:19], 0 offen offset:16")
    a("s_branch L_conv_end")
    a.label("L_cw_w")
    a("s_cmp_ge_u32 s2, 1000")
    a("s_cbranch_scc1 L_cw_touch")
    a(f"s_load_dwordx2 s[4:5], s[0:1], {KA['ws']}")
    a("s_mov_b32 s30, 0x05040100")
    a("s_mov_b32 s31, 0x07060302")
    a("s_cmp_lt_u32 s2, 880")
    a("s_cbranch_scc0 L_cw_c")
    a(f"s_load_dwordx2 s[24:25], s[0:1], {KA['w_in']}")
    a("s_sub_u32 s3, s2, 640")
    a("s_lshl_b32 s3, s3, 8")
    a("v_add_u32 v1, s3, v0")
    a("v_lshrrev_b32 v2, 8, v1")
    a("v_mul_u32_u24 v2, 21846, v2")
    a("v_lshrrev_b32 v2, 16, v2")
    a("v_mul_u32_u24 v3, 768, v2")
    a("v_sub_u32 v1, v1, v3")
    a("s_waitcnt lgkmcnt(0)")
    a.srd(8, 24, 25, 640 * 1536 * 2)
    a.srd(20, 4, 5, 640 * 1536 * 2, L.WINB)
    a("s_mov_b32 s34, 3072")
    a("s_mov_b32 s35, 1536")
    a("s_branch L_cw_wc")
    a.label("L_cw_c")
    a(f"s_load_dwordx2 s[24:25], s[0:1], {KA['w_out']}")
    a("s_sub_u32 s3, s2, 880")
    a("s_lshl_b32 s3, s3, 8")
    a("v_add_u32 v1, s3, v0")
    a("v_mul_u32_u24 v2, 52429, v1")
    a("v_lshrrev_b32 v2, 24, v2")
    a("v_mul_u32_u24 v3, 320, v2")
    a("v_sub_u32 v1, v1, v3")
    a("s_waitcnt lgkmcnt(0)")
    a.srd(8, 24, 25, 768 * 640 * 2)
    a.srd(20, 4, 5, 768 * 640 * 2, L.WOUTB)
    a("s_mov_b32 s34, 1280")
    a("s_mov_b32 s35, 640")
    a.label("L_cw_wc")
    a("v_lshlrev_b32 v3, 3, v2")
    a("v_mul_lo_u32 v3, v3, s34")
    a("v_lshl_add_u32 v3, v1, 2, v3")
    for i in range(8):
        a(f"buffer_load_dword v{10+i}, v3, s[8:11], 0 offen")
        if i < 7:
            a("v_add_u32 v3, s34, v3")
    a("v_mul_lo_u32 v4, v2, s35")
    a("v_lshl_add_u32 v4, v1, 1, v4")
    a("v_lshlrev_b32 v4, 4, v4")
    a("s_waitcnt vmcnt(0)")
    for m in range(4):
        a(f"v_perm_b32 v{20+m}, v{10+2*m+1}, v{10+2*m}, s30")
        a(f"v_perm_b32 v{24+m}, v{10+2*m+1}, v{10+2*m}, s31")
    a("buffer_store_dwordx4 v[20:23], v4, s[20:23], 0 offen")
    a("buffer_store_dwordx4 v[24:27], v4, s[20:23], 0 offen offset:16")
    a("s_branch L_conv_end")
    a.label("L_cw_touch")
    a("s_sub_u32 s3, s2, 1000")
    a(f"s_load_dwordx2 s[8:9], s[0:1], {KA['A_q']}")
    a("s_lshl_b32 s3, s3, 16")
    a("v_lshlrev_b32 v1, 4, v0")
    a(f"s_mov_b32 s10, {2048*640*2}")
    a("s_mov_b32 s11, 0x00020000")
    a("s_waitcnt lgkmcnt(0)")
    for q in range(16):
        a(f"buffer_load_dwordx4 v[{8+4*q}:{11+4*q}], v1, s[8:11], s3 offen")
        a("s_add_u32 s3, s3, 4096")
    a.label("L_conv_end")
    a.end(K, 112)
    a.launch(K, 1040, 256, LDS)

def wave_sum(v, sdst):
    a("s_nop 1")
    for sh in (1, 2, 4, 8):
        a(f"v_add_f32_dpp v{v}, v{v}, v{v} row_shr:{sh} row_mask:0xf bank_mask:0xf bound_ctrl:0")
        a("s_nop 1")
    a(f"v_add_f32_dpp v{v}, v{v}, v{v} row_bcast:15 row_mask:0xa bank_mask:0xf")
    a("s_nop 1")
    a(f"v_add_f32_dpp v{v}, v{v}, v{v} row_bcast:31 row_mask:0xc bank_mask:0xf")
    a("s_nop 1")
    a(f"v_readlane_b32 s{sdst}, v{v}, 63")
    a("s_nop 1")

def ln_stats(xs, N, t0, smb, srinv):
    def pr(x): return f"v[{x}:{x+1}]"
    n = len(xs)
    a(f"v_pk_add_f32 {pr(t0)}, {pr(xs[0])}, {pr(xs[2])}")
    for i in range(4, n, 2):
        a(f"v_pk_add_f32 {pr(t0)}, {pr(t0)}, {pr(xs[i])}")
    a(f"v_add_f32 v{t0}, v{t0}, v{t0+1}")
    wave_sum(t0, 40)
    a(f"v_mov_b32 v{t0}, s40")
    a(f"v_mul_f32 v{t0}, {-1.0/N!r}, v{t0}")
    a(f"v_mov_b32 v{t0+1}, v{t0}")
    for i in range(0, n, 2):
        a(f"v_pk_add_f32 {pr(t0+2)}, {pr(xs[i])}, {pr(t0)}")
        if i == 0:
            a(f"v_pk_mul_f32 {pr(t0+4)}, {pr(t0+2)}, {pr(t0+2)}")
        else:
            a(f"v_pk_fma_f32 {pr(t0+4)}, {pr(t0+2)}, {pr(t0+2)}, {pr(t0+4)}")
    a(f"v_add_f32 v{t0+2}, v{t0+4}, v{t0+5}")
    wave_sum(t0 + 2, 41)
    a(f"v_mov_b32 v{t0+1}, s41")
    a(f"v_mul_f32 v{t0+1}, {1.0/N!r}, v{t0+1}")
    rnd2(t0, t0 + 1, t0 + 2)
    a(f"v_add_f32 v{t0+1}, 0x3727c5ac, v{t0+1}")
    rnd2(t0 + 1, t0 + 1, t0 + 2)
    a(f"v_sqrt_f32 v{t0+1}, v{t0+1}")
    a("s_nop 0")
    rnd2(t0 + 1, t0 + 1, t0 + 2)
    a(f"v_rcp_f32 v{t0+2}, v{t0+1}")
    a(f"v_mov_b32 v{t0+1}, v{t0}")
    a(f"v_mov_b32 v{t0+3}, v{t0+2}")

def ln_apply(xs, dst, t0, tmp):
    def pr(x): return f"v[{x}:{x+1}]"
    for i in range(0, len(xs), 2):
        a(f"v_pk_add_f32 {pr(dst[i])}, {pr(xs[i])}, {pr(t0)}")
        rnd2(dst[i], dst[i + 1], tmp)
        a(f"v_pk_mul_f32 {pr(dst[i])}, {pr(dst[i])}, {pr(t0+2)}")
        rnd2(dst[i], dst[i + 1], tmp)

def gen_lnx(K, first):
    a.begin(K)
    E = f"L_{K}_end"
    def pr(x): return f"v[{x}:{x+1}]"
    a("s_cmp_ge_u32 s2, 256")
    a(f"s_cbranch_scc1 {E}")
    a.code_pf(["gemm1_0_kernel"] if first or not GDIAG else ["gemm1_1_kernel"], 1, 92)
    a(f"s_load_dwordx2 s[4:5], s[0:1], {KA['ws']}")
    a(f"s_load_dwordx2 s[6:7], s[0:1], {KA['A_q']}")
    a("s_and_b32 s3, s2, 7")
    a("s_lshl_b32 s3, s3, 5")
    a("s_lshr_b32 s2, s2, 3")
    a("s_add_u32 s2, s2, s3")
    a("v_and_b32 v1, 63, v0")
    a("v_lshrrev_b32 v2, 6, v0")
    a("s_lshl_b32 s3, s2, 3")
    a("s_lshl_b32 s24, s2, 4")
    a(f"v_mul_u32_u24 v3, {L.TS}, v0")
    a(f"v_add_u32 v4, {512*L.TS}, v3")
    a("v_add_u32 v5, s3, v2")
    a("v_mul_u32_u24 v8, 1280, v5")
    a("v_lshl_add_u32 v6, v1, 4, v8")
    a("v_lshl_add_u32 v8, v1, 2, v8")
    a("s_waitcnt lgkmcnt(0)")
    if first:
        a.srd(8, 6, 7, 2048 * 640 * 2)
        a.srd(12, 4, 5, 640 * L.TS, L.YT)
    else:
        a.srd(8, 4, 5, 2048 * 640 * 2, L.X2)
        a.srd(12, 4, 5, 2048 * 640 * 2, L.YR)
    a("buffer_load_dwordx4 v[48:51], v6, s[8:11], 0 offen")
    a("buffer_load_dword v52, v8, s[8:11], 0 offen offset:1024")
    if first:
        a("buffer_load_dwordx4 v[40:43], v3, s[12:15], s24 offen")
        a("buffer_load_dwordx4 v[44:47], v4, s[12:15], s24 offen")
        a.srd(24, 4, 5, 2048 * 640 * 2, L.YR)
    else:
        a("buffer_load_dwordx4 v[40:43], v6, s[12:15], 0 offen")
        a("buffer_load_dword v44, v8, s[12:15], 0 offen offset:1024")
    a.srd(16, 4, 5, 2048 * 640 * 2, L.X1)
    a.srd(20, 4, 5, 2048 * 640 * 2, L.XNB)
    Y = list(range(80, 90))
    X = list(range(60, 70))
    Q = list(range(100, 110))
    a("s_waitcnt vmcnt(2)")
    for i in range(5):
        unpack(X[2 * i], X[2 * i + 1], 48 + i)
    ln_stats(X, 640, 10, 42, 43)
    ln_apply(X, Q, 10, 16)
    if first:
        a("v_lshrrev_b32 v7, 3, v0")
        a("v_lshlrev_b32 v7, 2, v7")
        a("v_lshl_add_u32 v7, v0, 4, v7")
        a("s_waitcnt vmcnt(0)")
        a("ds_write2_b32 v7, v40, v41 offset0:0 offset1:1")
        a("ds_write2_b32 v7, v42, v43 offset0:2 offset1:3")
        a("v_cmp_gt_u32 vcc, 128, v0")
        a("s_and_saveexec_b64 s[30:31], vcc")
        a(f"v_add_u32 v9, {512*16 + 64*4}, v7")
        a("ds_write2_b32 v9, v44, v45 offset0:0 offset1:1")
        a("ds_write2_b32 v9, v46, v47 offset0:2 offset1:3")
        a("s_mov_b64 exec, s[30:31]")
        a("v_mul_u32_u24 v7, 132, v1")
        a("v_lshl_add_u32 v7, v2, 1, v7")
        a("v_lshrrev_b32 v9, 2, v1")
        a("v_lshlrev_b32 v9, 2, v9")
        a("v_lshl_add_u32 v9, v1, 5, v9")
        a("v_lshl_add_u32 v9, v2, 1, v9")
        a("s_waitcnt lgkmcnt(0)")
        a("s_barrier")
        for i in range(8):
            a(f"ds_read_u16_d16_hi v{Y[i]}, v7 offset:{i*16}")
        for i in range(2):
            a(f"ds_read_u16_d16_hi v{Y[8+i]}, v9 offset:{512*16 + 64*4 + i*16}")
        a("s_waitcnt lgkmcnt(0)")
        for i in range(10):
            a(f"v_and_b32 v{Y[i]}, 0xffff0000, v{Y[i]}")
        for i in range(5):
            a(f"v_cvt_pk_bf16_f32 v{112+i}, v{Y[2*i]}, v{Y[2*i+1]}")
        a("buffer_store_dwordx4 v[112:115], v6, s[24:27], 0 offen")
        a("buffer_store_dword v116, v8, s[24:27], 0 offen offset:1024")
    else:
        a("s_waitcnt vmcnt(0)")
        for i in range(5):
            unpack(Y[2 * i], Y[2 * i + 1], 40 + i)
    for i in range(0, 10, 2):
        a(f"v_pk_mul_f32 {pr(Q[i])}, {pr(Q[i])}, {pr(Y[i])}")
        rnd2(Q[i], Q[i + 1], 16)
        a(f"v_pk_add_f32 {pr(X[i])}, {pr(X[i])}, {pr(Q[i])}")
        a(f"v_cvt_pk_bf16_f32 v{120+i//2}, v{X[i]}, v{X[i+1]}")
        unpack(X[i], X[i + 1], 120 + i // 2)
    a("buffer_store_dwordx4 v[120:123], v6, s[16:19], 0 offen")
    a("buffer_store_dword v124, v8, s[16:19], 0 offen offset:1024")
    ln_stats(X, 640, 10, 42, 43)
    ln_apply(X, Q, 10, 16)
    for i in range(0, 10, 2):
        a(f"v_cvt_pk_bf16_f32 v{128+i//2}, v{Q[i]}, v{Q[i+1]}")
    a("v_lshlrev_b32 v7, 15, v1")
    a("v_lshl_add_u32 v7, v5, 4, v7")
    a("buffer_store_dwordx4 v[128:131], v7, s[20:23], 0 offen")
    a("v_lshrrev_b32 v7, 2, v1")
    a("v_lshlrev_b32 v7, 15, v7")
    a("v_lshl_add_u32 v7, v5, 4, v7")
    a("v_and_b32 v9, 3, v1")
    a("v_lshl_add_u32 v7, v9, 2, v7")
    a("v_add_u32 v7, 0x200000, v7")
    a("buffer_store_dword v132, v7, s[20:23], 0 offen")
    a.label(E)
    a.end(K, 136)
    a.launch(K, 256, 512, (640 * 16 + 80 * 4) if first else 0)

def gen_lnz(K):
    a.begin(K)
    E = f"L_{K}_end"
    a("s_cmp_ge_u32 s2, 256")
    a(f"s_cbranch_scc1 {E}")
    a.code_pf([K.replace("lnz", "gemm2_")], 1, 92)
    a(f"s_load_dwordx2 s[4:5], s[0:1], {KA['ws']}")
    a("s_and_b32 s3, s2, 7")
    a("s_lshl_b32 s3, s3, 5")
    a("s_lshr_b32 s2, s2, 3")
    a("s_add_u32 s2, s2, s3")
    a("v_and_b32 v1, 63, v0")
    a("v_lshrrev_b32 v2, 6, v0")
    a("s_lshl_b32 s3, s2, 3")
    a("v_add_u32 v5, s3, v2")
    a("v_mul_u32_u24 v8, 1536, v5")
    a("v_lshl_add_u32 v6, v1, 4, v8")
    a("v_lshl_add_u32 v8, v1, 3, v8")
    a("s_waitcnt lgkmcnt(0)")
    a.srd(8, 4, 5, 2048 * 768 * 2, L.Z2)
    a("buffer_load_dwordx4 v[48:51], v6, s[8:11], 0 offen")
    a("buffer_load_dwordx2 v[52:53], v8, s[8:11], 0 offen offset:1024")
    a.srd(12, 4, 5, 2048 * 768 * 2, L.Z2NB)
    a("v_mul_u32_u24 v7, 132, v1")
    a("v_lshl_add_u32 v7, v2, 1, v7")
    a("v_lshrrev_b32 v9, 1, v1")
    a("v_lshlrev_b32 v9, 2, v9")
    a("v_lshl_add_u32 v9, v1, 6, v9")
    a("v_lshl_add_u32 v9, v2, 1, v9")
    a("s_waitcnt vmcnt(0)")
    X = list(range(60, 72))
    for i in range(6):
        unpack(X[2 * i], X[2 * i + 1], 48 + i)
    ln_stats(X, 768, 10, 42, 43)
    Q = list(range(100, 112))
    ln_apply(X, Q, 10, 16)
    for i in range(8):
        a(f"ds_write_b16_d16_hi v7, v{Q[i]} offset:{i*16}")
    for i in range(4):
        a(f"ds_write_b16_d16_hi v9, v{Q[8+i]} offset:{64*132 + i*16}")
    a("v_lshrrev_b32 v7, 3, v0")
    a("v_lshlrev_b32 v7, 2, v7")
    a("v_lshl_add_u32 v7, v0, 4, v7")
    a("s_mul_i32 s24, s2, 12288")
    a("v_lshlrev_b32 v8, 4, v0")
    a("s_waitcnt lgkmcnt(0)")
    a("s_barrier")
    a("ds_read2_b32 v[20:21], v7 offset0:0 offset1:1")
    a("ds_read2_b32 v[22:23], v7 offset0:2 offset1:3")
    a("v_cmp_gt_u32 vcc, 256, v0")
    a("s_and_saveexec_b64 s[30:31], vcc")
    a(f"v_add_u32 v7, {64*132}, v7")
    a("ds_read2_b32 v[24:25], v7 offset0:0 offset1:1")
    a("ds_read2_b32 v[26:27], v7 offset0:2 offset1:3")
    a("s_waitcnt lgkmcnt(0)")
    a("v_add_u32 v10, 8192, v8")
    a("buffer_store_dwordx4 v[24:27], v10, s[12:15], s24 offen")
    a("s_mov_b64 exec, s[30:31]")
    a("s_waitcnt lgkmcnt(0)")
    a("buffer_store_dwordx4 v[20:23], v8, s[12:15], s24 offen")
    a.label(E)
    a.end(K, 120)
    a.launch(K, 256, 512, 96 * 132)

def main():
    import gemm
    gen_prep()
    gen_conv()
    for layer in range(2):
        sfx = str(layer) if (GDIAG or layer == 0) else None
        gen_lnx(f"lnx{layer}_kernel", layer == 0)
        if sfx is not None:
            n1 = f"gemm1_{sfx}_kernel"; l1 = gemm.gen_gemm1(a, n1)
        a.launch(n1, 256, 512, l1)
        if os.environ.get("DUP") and layer == 0:
            n1b = "gemm1_dup_kernel"; gemm.gen_gemm1(a, n1b); a.launch(n1b, 256, 512, l1)
        if sfx is not None:
            nz = f"lnz{sfx}_kernel"; gen_lnz(nz)
        else:
            a.launch(nz, 256, 512, 96 * 132)
        if sfx is not None:
            n2 = f"gemm2_{sfx}_kernel"; l2 = gemm.gen_gemm2(a, n2)
        a.launch(n2, 256, 512, l2)
        if os.environ.get("DUP") and layer == 0:
            n2b = "gemm2_dup_kernel"; gemm.gen_gemm2(a, n2b); a.launch(n2b, 256, 512, l2)
        n3 = f"gemm3_{layer}_kernel"; l3 = gemm.gen_gemm3(a, n3, layer == 1); a.launch(n3, 256, 512, l3)
        if os.environ.get("DUP") and layer == 0:
            n3b = "gemm3_dup_kernel"; gemm.gen_gemm3(a, n3b, False); a.launch(n3b, 256, 512, l3)
    if os.environ.get("DUMMY"):
        a.begin("nop_kernel"); a.end("nop_kernel", 8)
        for _ in range(int(os.environ["DUMMY"])):
            a.launch("nop_kernel", 8, 64, 0)
    open(sys.argv[1] if len(sys.argv) > 1 else f"cdna_kernels/{NAME}.s", "w").write(a.text())

if __name__ == "__main__":
    import gen
    gen.main()
```

```python
import layout as L
import os, struct
from gen import KA
DIAG = os.environ.get("DIAG", "")
def stamp(a, K, i):
    if DIAG and DIAG in K:
        a(f"s_memtime s[{60+2*i}:{61+2*i}]")
def stamp_out(a, K, n):
    if DIAG and DIAG in K and not os.environ.get("LSTAMP"):
        a("s_waitcnt vmcnt(0) lgkmcnt(0)")
        a.srd(40, 4, 5, 1 << 20, 64 << 20)
        a("s_lshl_b32 s3, s2, 6")
        a("v_mov_b32 v5, s3")
        a("v_cmp_eq_u32 vcc, 0, v0")
        a("s_and_saveexec_b64 s[50:51], vcc")
        for i in range(n):
            a(f"v_mov_b32 v6, s{60+2*i}")
            a(f"v_mov_b32 v7, s{61+2*i}")
            a(f"buffer_store_dwordx2 v[6:7], v5, s[40:43], 0 offen offset:{8*i}")
            a("s_nop 1")
        a("s_mov_b64 exec, s[50:51]")

def magic_div(d, maxp):
    for s in range(10, 25):
        m = -(-(1 << s) // d)
        if m < (1 << 24) and all((p * m) >> s == p // d for p in range(maxp)) and maxp * m < (1 << 32):
            return m, s
    raise Exception("no magic")

def gen_gemm(a, K, BM, BN, KDIM, NST, WM, WN, MT, NT, Asrc, Bsrc, epi, pf=None, nxt=None, rot=False, BARLAG=int(os.environ.get('BARLAG','0')), RPM=int(os.environ.get('RPM','1'))):
    assert WM * WN == 4
    TM = BM // WM // 16
    TN = BN // WN // 16
    LA = BM // 32
    LB = -(-BN // 32)
    LW = LA + LB
    AIMG = BM * 128
    BIMG = LB * 4 * 1024
    STAGE = AIMG + BIMG
    NK = KDIM // 64
    E = f"L_{K}_end"
    a.begin(K)
    a(f"s_cmp_ge_u32 s2, {MT*NT}")
    a(f"s_cbranch_scc1 {E}")
    stamp(a, K, 0)
    if DIAG and DIAG in K: a("s_memrealtime s[72:73]")
    a(f"s_load_dwordx2 s[4:5], s[0:1], {KA['ws']}")
    a(f"s_load_dwordx4 s[28:31], s[0:1], {KA['w_sp']}")
    a(f"s_load_dwordx2 s[32:33], s[0:1], {KA['out']}")
    MTX = MT // 8
    assert MTX * NT == 32 and (NT & (NT - 1)) == 0
    lg = NT.bit_length() - 1
    a("s_and_b32 s6, s2, 7")
    a("s_lshr_b32 s7, s2, 3")
    a(f"s_mul_i32 s22, s6, {MTX}")
    a(f"s_lshr_b32 s3, s7, {lg}")
    a("s_add_u32 s22, s22, s3")
    a(f"s_and_b32 s23, s7, {NT-1}")
    a("v_and_b32 v1, 63, v0")
    a("v_and_b32 v2, 15, v0")
    a("v_bfe_u32 v3, v0, 4, 2")
    a("v_lshrrev_b32 v4, 6, v0")
    a("s_nop 0")
    a("v_readfirstlane_b32 s21, v4")
    a(f"s_mul_i32 s34, s22, {BM}")
    a(f"s_mul_i32 s35, s23, {BN}")
    a("s_cmp_lt_u32 s21, 4")
    a(f"s_cbranch_scc1 L_{K}_comp")
    a("s_sub_u32 s21, s21, 4")
    a("s_setprio 3")
    LST = bool(os.environ.get("LSTAMP")) and DIAG in K
    if LST: a("s_memtime s[62:63]")
    vDA = list(range(10, 10 + LA))
    vDB = list(range(14, 14 + LB))
    NBI = BN // 8
    if Asrc[0] == 'C':
        _, off, RT = Asrc
        srdA = lambda: a.srd(8, 4, 5, RT * KDIM * 2, off)
        stepA = 8 * RT * 16
        for q in range(LA):
            a(f"s_mul_i32 s3, s21, {LA*64}")
            a(f"s_add_u32 s3, s3, {q*64}")
            a("v_add_u32 v5, s3, v1")
            lb = BM.bit_length() - 1
            assert BM == 1 << lb
            a(f"v_lshrrev_b32 v6, {lb}, v5")
            a(f"v_and_b32 v5, {BM-1}, v5")
            a(f"v_mul_u32_u24 v6, {RT}, v6")
            a("v_add3_u32 v5, v5, v6, s34")
            a(f"v_lshlrev_b32 v{vDA[q]}, 4, v5")
        swz = False
    else:
        _, rowbytes = Asrc
        srdA = lambda: a.srd(8, 28, 29, 2048 * 2048 * 2)
        stepA = 128
        for q in range(LA):
            a(f"s_mul_i32 s3, s21, {LA*64}")
            a(f"s_add_u32 s3, s3, {q*64}")
            a("v_add_u32 v5, s3, v1")
            a("v_lshrrev_b32 v6, 3, v5")
            a("v_and_b32 v5, 7, v5")
            a("v_bfe_u32 v7, v6, 1, 3")
            a("v_xor_b32 v5, v5, v7")
            a("v_add_u32 v6, s34, v6")
            a(f"v_mul_u32_u24 v6, {rowbytes}, v6")
            a(f"v_lshl_add_u32 v{vDA[q]}, v5, 4, v6")
        swz = True
    _, offB, RTB = Bsrc
    stepB = 8 * RTB * 16
    mg, sh = magic_div(BN, LB * 256)
    for q in range(LB):
        a(f"s_lshl_b32 s3, s21, 6")
        a(f"s_add_u32 s3, s3, {q*256}")
        a("v_add_u32 v5, s3, v1")
        a(f"v_mul_u32_u24 v6, {mg}, v5")
        a(f"v_lshrrev_b32 v6, {sh}, v6")
        a(f"v_mul_u32_u24 v7, {BN}, v6")
        a("v_sub_u32 v7, v5, v7")
        a(f"v_mul_u32_u24 v6, {RTB}, v6")
        a("v_add3_u32 v7, v7, v6, s35")
        a(f"v_lshlrev_b32 v{vDB[q]}, 4, v7")
    a(f"s_mul_i32 s24, s21, {LA*1024}")
    a(f"s_lshl_b32 s25, s21, 10")
    a(f"s_add_u32 s25, s25, {AIMG}")
    if rot:
        a("s_and_b32 s39, s2, 7")
        a(f"s_mul_i32 s39, s39, {NK // 8}")
        a(f"s_mul_i32 s16, s39, {stepA}")
        a(f"s_mul_i32 s17, s39, {stepB}")
    else:
        a("s_mov_b32 s16, 0")
        a("s_mov_b32 s17, 0")
    a("s_mov_b32 s18, 0")
    a("s_waitcnt lgkmcnt(0)")
    srdA()
    a.srd(12, 4, 5, RTB * KDIM * 2, offB)
    def loader(tag, LBw):
        LWw = LA + LBw
        def dma_stage():
            a("s_add_u32 s26, s18, s24")
            a("s_add_u32 s27, s18, s25")
            for q in range(LA):
                a(f"s_add_u32 m0, s26, {q*1024}")
                a("s_nop 0")
                if not os.environ.get("NOLOAD"): a(f"buffer_load_dwordx4 v{vDA[q]}, s[8:11], s16 offen lds")
            for q in range(LBw):
                a(f"s_add_u32 m0, s27, {q*4096}")
                a("s_nop 0")
                if not os.environ.get("NOLOAD"): a(f"buffer_load_dwordx4 v{vDB[q]}, s[12:15], s17 offen lds")
            a(f"s_add_u32 s16, s16, {0 if os.environ.get('HOTA') else stepA}")
            a(f"s_add_u32 s17, s17, {0 if os.environ.get('HOTB') else stepB}")
            if rot:
                a(f"s_cmp_eq_u32 s16, {NK*stepA}")
                a("s_cselect_b32 s16, 0, s16")
                a("s_cselect_b32 s17, 0, s17")
            a(f"s_add_u32 s18, s18, {STAGE}")
            a(f"s_cmp_eq_u32 s18, {NST*STAGE}")
            a("s_cselect_b32 s18, 0, s18")
        issued = 0
        def issue_upto(n):
            nonlocal issued
            while issued < min(n, NK):
                dma_stage(); issued += 1
        b = 0
        if LST:
            a("s_memtime s[64:65]")
            issue_upto(1)
            a("s_memtime s[66:67]")
            a("s_waitcnt vmcnt(0)")
            a("s_memtime s[68:69]")
            issue_upto(2)
            a("s_waitcnt vmcnt(0)")
            a("s_memtime s[70:71]")
        issue_upto(min(int(os.environ.get('INIT','4')), NST))
        looped = False
        while b <= NK:
            nloop = NK - issued
            steady = (issued == b + NST) or (os.environ.get('RAMP','2') == '1')
            if not looped and b >= 1 and steady and nloop >= 2:
                a(f"s_mov_b32 s20, {nloop}")
                a.label(f"L_{K}_lloop{tag}")
                a(f"s_waitcnt vmcnt({(issued - b - 2)*LWw})")
                a("s_barrier")
                dma_stage()
                a("s_sub_u32 s20, s20, 1")
                a("s_cmp_lg_u32 s20, 0")
                a(f"s_cbranch_scc1 L_{K}_lloop{tag}")
                b += nloop; issued += nloop
                looped = True
                continue
            need = min(b + 1, NK - 1)
            a(f"s_waitcnt vmcnt({(issued - need - 1) * LWw})")
            a("s_barrier")
            lim = (b + NST + 1) if b >= 1 else NST
            issue_upto(min(issued + int(os.environ.get('RAMP','2')), lim))
            b += 1
        if pf is not None and os.environ.get("PF"):
            kind, nbytes_wg = pf
            a("s_lshr_b32 s3, s2, 3")
            if kind == 'wsp':
                a.srd(52, 28, 29, 2048 * 2048 * 2)
                a("s_and_b32 s6, s2, 7")
                a("s_lshl_b32 s6, s6, 5")
                a("s_add_u32 s3, s3, s6")
            else:
                a.srd(52, 4, 5, 768 * 640 * 2, L.WOUTB)
            a(f"s_mul_i32 s3, s3, {nbytes_wg}")
            a("v_lshlrev_b32 v5, 4, v1")
            a(f"v_lshl_add_u32 v5, s21, 10, v5")
            a("v_add_u32 v5, s3, v5")
            for q in range(-(-nbytes_wg // 4096)):
                a(f"buffer_load_dwordx4 v[{20+4*q}:{23+4*q}], v5, s[52:55], 0 offen")
                a("v_add_u32 v5, 4096, v5")
        a.code_pf(nxt, 5, 24)
        if LST:
            a("s_waitcnt lgkmcnt(0)")
            a.srd(40, 4, 5, 1 << 20, 64 << 20)
            a("s_lshl_b32 s3, s2, 6")
            a("v_mov_b32 v5, s3")
            a("v_cmp_eq_u32 vcc, 256, v0")
            a("s_and_saveexec_b64 s[50:51], vcc")
            for i in range(6):
                a(f"v_mov_b32 v6, s{60+2*i}")
                a(f"v_mov_b32 v7, s{61+2*i}")
                a(f"buffer_store_dwordx2 v[6:7], v5, s[40:43], 0 offen offset:{8*i}")
                a("s_nop 1")
            a("s_mov_b64 exec, s[50:51]")
        a(f"s_branch {E if not epi.split else 'L_' + K + '_ldepi'}")
    if NBI % 4 == 0:
        loader("", LB)
    else:
        a(f"s_cmp_lt_u32 s21, {NBI % 4}")
        a(f"s_cbranch_scc0 L_{K}_ld2")
        loader("a", LB)
        a.label(f"L_{K}_ld2")
        loader("b", LB - 1)
    a.label(f"L_{K}_comp")
    vRA0, vRA1, vRB, vA0c, vA1c, vBc = 18, 19, 20, 21, 22, 23
    F0 = 24
    NF = (TM + TN) * 4
    ACC = F0 + 4 * NF
    NACC = TM * TN * 4
    EP = ACC + NACC
    wm_rows = BM // WM
    wn_cols = BN // WN
    if WN == 2:
        a("s_lshr_b32 s36, s21, 1")
        a("s_and_b32 s37, s21, 1")
    else:
        a("s_mov_b32 s36, s21")
        a("s_mov_b32 s37, 0")
    a(f"s_mul_i32 s36, s36, {wm_rows}")
    a(f"s_mul_i32 s37, s37, {wn_cols}")
    if not swz:
        a(f"v_mul_u32_u24 v5, {BM}, v3")
        a("v_add3_u32 v5, v5, v2, s36")
        a(f"v_lshlrev_b32 v{vRA0}, 4, v5")
        def a_off(kk, tm): return kk * 4 * BM * 16 + tm * 256
        def a_reg(kk): return vA0c
    else:
        a("v_lshrrev_b32 v5, 1, v2")
        a("v_xor_b32 v5, v5, v3")
        a("v_add_u32 v6, s36, v2")
        a("v_lshlrev_b32 v6, 7, v6")
        a(f"v_lshl_add_u32 v{vRA0}, v5, 4, v6")
        a(f"v_xor_b32 v{vRA1}, 64, v{vRA0}")
        def a_off(kk, tm): return tm * 2048
        def a_reg(kk): return vA0c if kk == 0 else vA1c
    a(f"v_mul_u32_u24 v5, {BN}, v3")
    a("v_add3_u32 v5, v5, v2, s37")
    a(f"v_lshlrev_b32 v5, 4, v5")
    a(f"v_add_u32 v{vRB}, {AIMG}, v5")
    def b_off(kk, tn): return kk * 4 * BN * 16 + tn * 256
    for i in range(NACC):
        a(f"v_mov_b32 v{ACC+i}, 0")
    a("s_waitcnt lgkmcnt(0)")
    epi.pre(a, dict(TM=TM, TN=TN, EP=EP, BM=BM, BN=BN))
    def set_addr():
        a(f"v_add_u32 v{vA0c}, s19, v{vRA0}")
        if swz:
            a(f"v_add_u32 v{vA1c}, s19, v{vRA1}")
        a(f"v_add_u32 v{vBc}, s19, v{vRB}")
    def read_list(kk, F):
        out = []
        if os.environ.get("NOCOMP") or os.environ.get("NOREAD"): return out
        for tm in range(TM):
            r = F + tm * 4
            out.append(f"ds_read_b128 v[{r}:{r+3}], v{a_reg(kk)} offset:{a_off(kk, tm)}")
        for tn in range(TN):
            r = F + TM * 4 + tn * 4
            out.append(f"ds_read_b128 v[{r}:{r+3}], v{vBc} offset:{b_off(kk, tn)}")
        return out
    def mfma_list(F):
        out = []
        for tm in range(TM):
            for tn in range(TN):
                c = ACC + (tm * TN + tn) * 4
                ra = F + tm * 4
                rb = F + TM * 4 + tn * 4
                out.append("s_nop 0" if os.environ.get("NOCOMP") else f"v_mfma_f32_16x16x32_bf16 v[{c}:{c+3}], v[{rb}:{rb+3}], v[{ra}:{ra+3}], v[{c}:{c+3}]")
        return out
    def adv():
        a(f"s_add_u32 s19, s19, {STAGE}")
        a(f"s_cmp_eq_u32 s19, {NST*STAGE}")
        a("s_cselect_b32 s19, 0, s19")
        set_addr()
    a("s_mov_b32 s19, 0")
    a(f"s_mov_b32 s20, {NK//2}")
    set_addr()
    a("s_mov_b32 s82, 0")
    stamp(a, K, 1)
    a("s_barrier")
    stamp(a, K, 2)
    for r in read_list(0, F0) + read_list(1, F0 + NF):
        a(r)
    adv()
    a("s_waitcnt lgkmcnt(0)")
    LP = f"L_{K}_loop"
    a.label(LP)
    for par in range(2):
        cur = F0 + par * 2 * NF
        nxt = F0 + (1 - par) * 2 * NF
        rl = read_list(0, nxt) + read_list(1, nxt + NF)
        ml = mfma_list(cur) + mfma_list(cur + NF)
        nbefore = len(ml) - BARLAG
        ri = 0
        for mi, m in enumerate(ml):
            if mi == nbefore:
                while ri < len(rl):
                    a(rl[ri]); ri += 1
                a("s_waitcnt lgkmcnt(0)")
                a("s_barrier")
                if os.environ.get("ITSTAMP") and DIAG in K:
                    a("s_memtime s[80:81]")
                    a("s_waitcnt lgkmcnt(0)")
                    a("s_mov_b32 m0, s82"); a("s_nop 0"); a("v_writelane_b32 v250, s80, m0")
                    a("s_add_u32 s82, s82, 1")
            a(m)
            for _ in range(RPM):
                if ri < len(rl) and mi < nbefore:
                    a(rl[ri]); ri += 1
        if nbefore == len(ml):
            while ri < len(rl):
                a(rl[ri]); ri += 1
            adv()
            a("s_waitcnt lgkmcnt(0)")
            a("s_barrier")
        else:
            adv()
    a("s_sub_u32 s20, s20, 1")
    a("s_cmp_lg_u32 s20, 0")
    a(f"s_cbranch_scc1 {LP}")
    stamp(a, K, 3)
    a("s_nop 7")
    a("s_nop 1")
    a("s_waitcnt vmcnt(0) lgkmcnt(0)")
    stamp(a, K, 4)
    if epi.split:
        H = TM // 2
        nq = H * TN
        a("v_lshlrev_b32 v5, 4, v1")
        a(f"s_mul_i32 s3, s21, {nq*1024}")
        a("v_add_u32 v5, s3, v5")
        for q in range(nq):
            c = ACC + (H * TN + q) * 4
            a(f"ds_write_b128 v5, v[{c}:{c+3}] offset:{q*1024}")
        a("s_waitcnt lgkmcnt(0)")
        a("s_barrier")
        a(f"s_branch L_{K}_epi")
        a.label(f"L_{K}_ldepi")
        if WN == 2:
            a("s_lshr_b32 s36, s21, 1")
            a("s_and_b32 s37, s21, 1")
        else:
            a("s_mov_b32 s36, s21")
            a("s_mov_b32 s37, 0")
        a(f"s_mul_i32 s36, s36, {wm_rows}")
        a(f"s_add_u32 s36, s36, {H*16}")
        a(f"s_mul_i32 s37, s37, {wn_cols}")
        a("v_lshlrev_b32 v5, 4, v1")
        a(f"s_mul_i32 s3, s21, {nq*1024}")
        a("v_add_u32 v5, s3, v5")
        a("s_barrier")
        for q in range(nq):
            c = ACC + q * 4
            a(f"ds_read_b128 v[{c}:{c+3}], v5 offset:{q*1024}")
        a("s_waitcnt lgkmcnt(0)")
        a.label(f"L_{K}_epi")
        epi.post(a, dict(TM=H, TN=TN, EP=EP, ACC=ACC, BM=BM, BN=BN))
    else:
        epi.post(a, dict(TM=TM, TN=TN, EP=EP, ACC=ACC, BM=BM, BN=BN))
    if DIAG and DIAG in K:
        a("s_waitcnt vmcnt(0)")
    stamp(a, K, 5)
    if DIAG and DIAG in K: a("s_memrealtime s[74:75]")
    stamp_out(a, K, 8)
    if os.environ.get("ITSTAMP") and DIAG in K:
        a.srd(40, 4, 5, 1 << 20, 66 << 20)
        a("s_lshl_b32 s3, s2, 8")
        a("v_lshl_add_u32 v5, v1, 2, s3")
        a("s_cmp_eq_u32 s21, 0")
        a(f"s_cbranch_scc0 {E}")
        a("buffer_store_dword v250, v5, s[40:43], 0 offen")
    a.label(E)
    a.end(K, 256 if os.environ.get("ITSTAMP") else EP + epi.nregs)
    return NST * STAGE

def unpack(a, lo, hi, src):
    a(f"v_lshlrev_b32 v{lo}, 16, v{src}")
    a(f"v_and_b32 v{hi}, 0xffff0000, v{src}")

def rnd2(a, x0, x1, tmp):
    a(f"v_cvt_pk_bf16_f32 v{tmp}, v{x0}, v{x1}")
    unpack(a, x0, x1, tmp)

class Epi1:
    nregs = 16
    split = True
    def pre(self, a, c):
        pass
    def post(self, a, c):
        TM, TN, EP, ACC = c['TM'], c['TN'], c['EP'], c['ACC']
        EP += EP & 1
        a("s_cmp_lt_u32 s23, 8")
        a(f"s_mov_b32 s3, {L.Z2}")
        a(f"s_cselect_b32 s3, {L.Z1}, s3")
        a("s_add_u32 s40, s4, s3")
        a("s_addc_u32 s41, s5, 0")
        a(f"s_mov_b32 s42, {2048*768*2}")
        a("s_mov_b32 s43, 0x00020000")
        a("s_and_b32 s3, s23, 7")
        a("s_mul_i32 s3, s3, 96")
        a("s_add_u32 s3, s3, s37")
        a("s_add_u32 s6, s34, s36")
        a("v_add_u32 v5, s6, v2")
        a("v_mul_u32_u24 v5, 1536, v5")
        a("v_lshl_add_u32 v6, v3, 2, s3")
        a("v_lshl_add_u32 v5, v6, 1, v5")
        c1 = struct.unpack("<I", struct.pack("<f", -2.302208198))[0]
        c2 = struct.unpack("<I", struct.pack("<f", -0.1029432397))[0]
        C1, C2, ONE = EP + 6, EP + 8, EP + 10
        for r, v in ((C1, c1), (C2, c2), (ONE, 0x3f800000)):
            a(f"v_mov_b32 v{r}, {v:#x}")
            a(f"v_mov_b32 v{r+1}, {v:#x}")
        T = EP
        def pr(x): return f"v[{x}:{x+1}]"
        for tm in range(TM):
            for tn in range(TN):
                cc = ACC + (tm * TN + tn) * 4
                rnd2(a, cc, cc + 1, T + 4)
                rnd2(a, cc + 2, cc + 3, T + 5)
                for h in (0, 2):
                    a(f"v_pk_mul_f32 {pr(T+h)}, {pr(cc+h)}, {pr(cc+h)}")
                for h in (0, 2):
                    a(f"v_pk_fma_f32 {pr(T+h)}, {pr(T+h)}, {pr(C2)}, {pr(C1)}")
                for h in (0, 2):
                    a(f"v_pk_mul_f32 {pr(T+h)}, {pr(T+h)}, {pr(cc+h)}")
                for i in range(4):
                    a(f"v_exp_f32 v{T+i}, v{T+i}")
                a("s_nop 0")
                for h in (0, 2):
                    a(f"v_pk_add_f32 {pr(T+h)}, {pr(T+h)}, {pr(ONE)}")
                for i in range(4):
                    a(f"v_rcp_f32 v{T+i}, v{T+i}")
                a("s_nop 0")
                for h in (0, 2):
                    a(f"v_pk_mul_f32 {pr(T+h)}, {pr(T+h)}, {pr(cc+h)}")
                a(f"v_cvt_pk_bf16_f32 v{cc}, v{T}, v{T+1}")
                a(f"v_cvt_pk_bf16_f32 v{cc+1}, v{T+2}, v{T+3}")
                if tm > 0 and tn == 0:
                    a(f"v_add_u32 v5, {16*1536}, v5")
                if not os.environ.get("NOSTORE"): a(f"buffer_store_dwordx2 v[{cc}:{cc+1}], v5, s[40:43], 0 offen offset:{tn*32}")

class Epi2:
    nregs = 32
    split = False
    def pre(self, a, c):
        TM, TN, EP = c['TM'], c['TN'], c['EP']
        a.srd(40, 4, 5, 2048 * 768 * 2, L.Z1)
        a.srd(44, 30, 31, 2048 * 2)
        a("s_add_u32 s3, s35, s37")
        a("s_add_u32 s6, s34, s36")
        a("v_add_u32 v8, s6, v2")
        a("v_mul_u32_u24 v5, 1536, v8")
        a("v_lshl_add_u32 v6, v3, 2, s3")
        a("v_lshl_add_u32 v5, v6, 1, v5")
        a("v_lshlrev_b32 v7, 1, v8")
        for tm in range(TM):
            if tm > 0:
                a(f"v_add_u32 v5, {16*1536}, v5")
            for tn in range(TN):
                r = EP + (tm * TN + tn) * 2
                a(f"buffer_load_dwordx2 v[{r}:{r+1}], v5, s[40:43], 0 offen offset:{tn*32}")
            a(f"buffer_load_ushort v{EP+TM*TN*2+tm}, v7, s[44:47], 0 offen offset:{tm*32}")
        a("v_lshrrev_b32 v6, 3, v6")
        a("v_lshlrev_b32 v6, 15, v6")
        a("v_lshl_add_u32 v6, v8, 4, v6")
        a("v_and_b32 v7, 1, v3")
        a("v_lshl_add_u32 v9, v7, 3, v6")
    def post(self, a, c):
        TM, TN, EP, ACC = c['TM'], c['TN'], c['EP'], c['ACC']
        a.srd(40, 4, 5, 2048 * 768 * 2, L.HB)
        T = EP + TM * TN * 2 + TM
        for tm in range(TM):
            b = EP + TM * TN * 2 + tm
            a(f"v_lshlrev_b32 v{b}, 16, v{b}")
            for tn in range(TN):
                cc = ACC + (tm * TN + tn) * 4
                z = EP + (tm * TN + tn) * 2
                rnd2(a, cc, cc + 1, T + 4)
                rnd2(a, cc + 2, cc + 3, T + 4)
                for i in range(4):
                    a(f"v_add_f32 v{cc+i}, v{cc+i}, v{b}")
                rnd2(a, cc, cc + 1, T + 4)
                rnd2(a, cc + 2, cc + 3, T + 4)
                unpack(a, T, T + 1, z)
                unpack(a, T + 2, T + 3, z + 1)
                for i in range(4):
                    a(f"v_mul_f32 v{cc+i}, v{cc+i}, v{T+i}")
                a(f"v_cvt_pk_bf16_f32 v{cc}, v{cc}, v{cc+1}")
                a(f"v_cvt_pk_bf16_f32 v{cc+1}, v{cc+2}, v{cc+3}")
                a(f"v_add_u32 v{T+5}, {tn*2*32768 + tm*256}, v9")
                a(f"buffer_store_dwordx2 v[{cc}:{cc+1}], v{T+5}, s[40:43], 0 offen")

class Epi3:
    nregs = 24
    split = False
    def __init__(self, final):
        self.final = final
    def pre(self, a, c):
        TM, TN, EP = c['TM'], c['TN'], c['EP']
        a.srd(40, 4, 5, 2048 * 640 * 2, L.X1)
        a("s_add_u32 s3, s35, s37")
        a("s_add_u32 s6, s34, s36")
        a("v_add_u32 v8, s6, v2")
        a("v_mul_u32_u24 v5, 1280, v8")
        a("v_lshl_add_u32 v6, v3, 2, s3")
        a("v_lshl_add_u32 v9, v6, 1, v5")
        for tm in range(TM):
            for tn in range(TN):
                r = EP + (tm * TN + tn) * 2
                assert tm == 0
                a(f"buffer_load_dwordx2 v[{r}:{r+1}], v9, s[40:43], 0 offen offset:{tn*32}")
    def post(self, a, c):
        TM, TN, EP, ACC = c['TM'], c['TN'], c['EP'], c['ACC']
        if self.final:
            a.srd(40, 32, 33, 2048 * 640 * 2)
        else:
            a.srd(40, 4, 5, 2048 * 640 * 2, L.X2)
        T = EP + TM * TN * 2
        for tm in range(TM):
            for tn in range(TN):
                cc = ACC + (tm * TN + tn) * 4
                z = EP + (tm * TN + tn) * 2
                rnd2(a, cc, cc + 1, T + 4)
                rnd2(a, cc + 2, cc + 3, T + 4)
                unpack(a, T, T + 1, z)
                unpack(a, T + 2, T + 3, z + 1)
                for i in range(4):
                    a(f"v_add_f32 v{cc+i}, v{cc+i}, v{T+i}")
                a(f"v_cvt_pk_bf16_f32 v{cc}, v{cc}, v{cc+1}")
                a(f"v_cvt_pk_bf16_f32 v{cc+1}, v{cc+2}, v{cc+3}")
                a(f"buffer_store_dwordx2 v[{cc}:{cc+1}], v9, s[40:43], 0 offen offset:{tn*32}")

def gen_gemm1(a, K):
    return gen_gemm(a, K, 128, 96, 640, 5, 2, 2, 16, 16, ('C', L.XNB, 2048), ('C', L.WINB, 1536), Epi1(), pf=('wsp', 32768), nxt=[K.replace('gemm1_', 'lnz')])
def gen_gemm2(a, K):
    return gen_gemm(a, K, 64, 96, 2048, 7, 2, 2, 32, 8, ('R', 4096), ('C', L.Z2NB, 768), Epi2(), pf=('wout', 30720), nxt=['gemm3_0_kernel', 'gemm3_1_kernel'], rot=bool(os.environ.get('ROT')))
def gen_gemm3(a, K, final):
    return gen_gemm(a, K, 64, 80, 768, 7, 4, 1, 32, 8, ('C', L.HB, 2048), ('C', L.WOUTB, 640), Epi3(final), nxt=None if final else ['lnx1_kernel'])
```

```python
import sys
import layout as L
import os
GDIAG = bool(os.environ.get('GDIAG'))

NAME = "interleave_layers__ssm_conv_h3__mixer_gmlp__prompt"
KA = dict(A_q=0, A_k=8, A_v=16, shift_k=24, ssm_k=32, ssm_D=40, B_x=48, w_in=56, w_sp=64, b_sp=72, w_out=80,
          out=88, dbg=96, ws=104)

class Asm:
    def __init__(self):
        self.lines = []
        self.kernels = []
        self.launches = []
        self.uid = 0
        self.wgreg = 2
        self.next_of = {}
    def __call__(self, s):
        for ln in s.strip("\n").split("\n"):
            ln = ln.strip()
            if ln:
                self.lines.append("    " + ln)
    def label(self, l):
        self.lines.append(l + ":")
    def newlabel(self, base):
        self.uid += 1
        return f"L_{base}_{self.uid}"
    def begin(self, label):
        self.lines += [f".globl {label}", ".p2align 8", f".type {label},@function", f"{label}:"]
        if GDIAG:
            self("s_memrealtime s[96:97]")
            self("s_mov_b32 s95, s2")
    def end(self, label, vgpr, sgpr=102):
        if GDIAG:
            idx = len(self.kernels)
            self("s_mov_b64 exec, -1")
            self("s_waitcnt vmcnt(0) lgkmcnt(0)")
            self("s_memrealtime s[98:99]")
            self("s_load_dwordx2 s[88:89], s[0:1], 104")
            self("s_waitcnt lgkmcnt(0)")
            self(f"s_add_u32 s88, s88, {(80 << 20) + idx * (1 << 20)}")
            self("s_addc_u32 s89, s89, 0")
            self(f"s_mov_b32 s90, {1 << 20}")
            self("s_mov_b32 s91, 0x00020000")
            self("s_lshl_b32 s95, s95, 8")
            self("v_lshrrev_b32 v1, 6, v0")
            self("v_lshlrev_b32 v1, 4, v1")
            self("v_add_u32 v1, s95, v1")
            self("v_and_b32 v2, 63, v0")
            self("v_cmp_eq_u32 vcc, 0, v2")
            self("s_and_saveexec_b64 s[92:93], vcc")
            self("v_mov_b32 v4, s96"); self("v_mov_b32 v5, s97"); self("v_mov_b32 v6, s98"); self("v_mov_b32 v7, s99")
            self("buffer_store_dwordx4 v[4:7], v1, s[88:91], 0 offen")
            vgpr = max(vgpr, 8)
        self.lines.append("    s_endpgm")
        self.kernels.append((label, vgpr, sgpr))
    def launch(self, label, grid, block, lds):
        self.launches.append((label, grid, block, lds))
    def srd(self, d, base_lo, base_hi, nbytes, add=0):
        if add:
            self(f"s_add_u32 s{d}, s{base_lo}, {add}")
            self(f"s_addc_u32 s{d+1}, s{base_hi}, 0")
        else:
            self(f"s_mov_b32 s{d}, s{base_lo}")
            self(f"s_mov_b32 s{d+1}, s{base_hi}")
        self(f"s_mov_b32 s{d+2}, {nbytes}")
        self(f"s_mov_b32 s{d+3}, 0x00020000")
    def code_pf(self, nxts, vaddr, vdst):
        if os.environ.get("NOCPF") or not nxts:
            return
        self.uid += 1
        u = self.uid
        self(f"s_cmp_ge_u32 s2, 8")
        self(f"s_cbranch_scc1 L_cpf_{u}")
        self(f"v_lshlrev_b32 v{vaddr}, 4, v0")
        for i, nxt in enumerate(nxts):
            self("s_getpc_b64 s[100:101]")
            self.label(f"L_cpfpc_{u}_{i}")
            self(f"s_add_u32 s100, s100, {nxt}-L_cpfpc_{u}_{i}")
            self(f"s_addc_u32 s101, s101, ({nxt}-L_cpfpc_{u}_{i})>>32")
            self(f"v_cmp_gt_u32 vcc, L_text_end-{nxt}-16, v{vaddr}")
            self("s_and_saveexec_b64 s[98:99], vcc")
            self(f"global_load_dwordx4 v[{vdst}:{vdst+3}], v{vaddr}, s[100:101]")
            self("s_mov_b64 exec, s[98:99]")
        self.label(f"L_cpf_{u}")
    def text(self):
        hdr = open(f"cdna_kernels/{NAME}.s.ref").read().split("; Override launch geometry")[0]
        out = [hdr.rstrip("\n")]
        for (label, g, b, lds) in self.launches:
            out.append(f"; @launch kernel={label} grid=({g},1,1) block=({b},1,1) lds={lds}")
        out.append('.amdgcn_target "amdgcn-amd-amdhsa--gfx950"')
        out.append(".text")
        out += self.lines
        out.append("L_text_end:")
        out.append('.section .rodata,"a"')
        for (label, vgpr, sgpr) in self.kernels:
            acc = (vgpr + 3) // 4 * 4
            out += [".p2align 6", f".amdhsa_kernel {label}",
                    f"  .amdhsa_next_free_vgpr {vgpr}", f"  .amdhsa_next_free_sgpr {sgpr}",
                    f"  .amdhsa_accum_offset {acc}", "  .amdhsa_group_segment_fixed_size 0",
                    "  .amdhsa_kernarg_size 112", "  .amdhsa_user_sgpr_count 2",
                    "  .amdhsa_user_sgpr_kernarg_segment_ptr 1", "  .amdhsa_system_sgpr_workgroup_id_x 1",
                    ".end_amdhsa_kernel"]
        return "\n".join(out) + "\n"

a = Asm()

def unpack(dst_lo, dst_hi, src):
    a(f"v_lshlrev_b32 v{dst_lo}, 16, v{src}")
    a(f"v_and_b32 v{dst_hi}, 0xffff0000, v{src}")

def rnd2(x0, x1, tmp):
    a(f"v_cvt_pk_bf16_f32 v{tmp}, v{x0}, v{x1}")
    unpack(x0, x1, tmp)

def gen_prep():
    K = "prep_kernel"
    a.begin(K)
    a("s_cmp_ge_u32 s2, 200")
    a("s_cbranch_scc1 L_prep_end")
    a("s_cmp_ge_u32 s2, 160")
    a("s_cbranch_scc1 L_prep_touch")
    a(f"s_load_dwordx2 s[4:5], s[0:1], {KA['ws']}")
    a("s_mov_b32 s30, 0x05040100")
    a("s_mov_b32 s31, 0x07060302")
    a(f"s_load_dwordx4 s[24:27], s[0:1], {KA['A_k']}")
    a(f"s_load_dwordx2 s[28:29], s[0:1], {KA['shift_k']}")
    a("s_mul_i32 s3, s2, 52429")
    a("s_lshr_b32 s3, s3, 18")
    a("s_mul_i32 s6, s3, 5")
    a("s_sub_u32 s6, s2, s6")
    a("s_lshl_b32 s6, s6, 6")
    a("s_lshl_b32 s3, s3, 3")
    a("v_and_b32 v1, 63, v0")
    a("v_add_u32 v1, s6, v1")
    a("v_lshrrev_b32 v2, 6, v0")
    a("v_add_u32 v2, s3, v2")
    a("v_mul_u32_u24 v3, 10240, v2")
    a("v_lshl_add_u32 v3, v1, 2, v3")
    a("v_lshlrev_b32 v4, 4, v1")
    a("s_waitcnt lgkmcnt(0)")
    a.srd(8, 24, 25, 2048 * 640 * 2)
    a.srd(12, 26, 27, 2048 * 640 * 2)
    a.srd(16, 28, 29, 640 * 4 * 2)
    a.srd(20, 4, 5, 640 * L.TS, L.URT)
    a("buffer_load_dwordx4 v[48:51], v4, s[16:19], 0 offen")
    for i in range(3):
        off = (i - 3) * 1280
        a(f"v_add_u32 v4, {off & 0xffffffff}, v3")
        a(f"buffer_load_dword v{10+i}, v4, s[8:11], 0 offen")
    a("v_add_u32 v4, 5120, v3")
    for i in range(8):
        a(f"buffer_load_dword v{13+i}, v{3 if i < 4 else 4}, s[8:11], 0 offen offset:{(i & 3) * 1280}")
    for i in range(8):
        a(f"buffer_load_dword v{30+i}, v{3 if i < 4 else 4}, s[12:15], 0 offen offset:{(i & 3) * 1280}")
    a("s_waitcnt vmcnt(8)")
    unpack(92, 94, 48); unpack(96, 98, 49); unpack(93, 95, 50); unpack(97, 99, 51)
    for i in range(11):
        unpack(52 + 2 * i, 53 + 2 * i, 10 + i)
    a("s_waitcnt vmcnt(0)")
    def pr(x): return f"v[{x}:{x+1}]"
    for i in range(8):
        a(f"v_pk_mul_f32 {pr(100)}, {pr(52+2*i)}, {pr(98)}")
        rnd2(100, 101, 104)
        for j in (2, 1, 0):
            ki = i + 3 - j
            a(f"v_pk_mul_f32 {pr(102)}, {pr(52+2*ki)}, {pr(92+2*j)}")
            rnd2(102, 103, 104)
            a(f"v_pk_add_f32 {pr(100)}, {pr(100)}, {pr(102)}")
            rnd2(100, 101, 104)
        unpack(102, 103, 30 + i)
        a(f"v_pk_mul_f32 {pr(100)}, {pr(100)}, {pr(102)}")
        a(f"v_cvt_pk_bf16_f32 v{110+i}, v100, v101")
    for m in range(4):
        a(f"v_perm_b32 v{120+m}, v{110+6-2*m}, v{110+7-2*m}, s30")
        a(f"v_perm_b32 v{124+m}, v{110+6-2*m}, v{110+7-2*m}, s31")
    a(f"v_mul_u32_u24 v4, {2*L.TS}, v1")
    a("v_lshlrev_b32 v5, 4, v2")
    a("v_sub_u32 v4, v4, v5")
    a("v_add_u32 v4, 4080, v4")
    a(f"v_add_u32 v5, {L.TS}, v4")
    a("buffer_store_dwordx4 v[120:123], v4, s[20:23], 0 offen")
    a("buffer_store_dwordx4 v[124:127], v5, s[20:23], 0 offen")
    a("s_branch L_prep_end")
    a.label("L_prep_touch")
    if os.environ.get("CODEPF", "1") == "1":
        a("s_cmp_ge_u32 s2, 176")
        a("s_cbranch_scc1 L_prep_t1")
        a("s_getpc_b64 s[12:13]")
        a.label("L_prep_pc")
        a("s_add_u32 s12, s12, conv_kernel-L_prep_pc")
        a("s_addc_u32 s13, s13, 0")
        a("v_lshlrev_b32 v1, 4, v0")
        a("s_mov_b32 s14, 0")
        a.label("L_prep_cl")
        a("v_cmp_gt_u32 vcc, L_text_end-conv_kernel-16, v1")
        a("s_and_saveexec_b64 s[16:17], vcc")
        a("s_cbranch_execz L_prep_cd")
        a("global_load_dwordx4 v[48:51], v1, s[12:13]")
        a("v_add_u32 v1, 8192, v1")
        a("s_branch L_prep_cl")
        a.label("L_prep_cd")
        a("s_mov_b64 exec, -1")
        a.label("L_prep_t1")
    a("s_sub_u32 s3, s2, 160")
    a(f"s_load_dwordx2 s[8:9], s[0:1], {KA['ssm_k']}")
    a("s_lshl_b32 s3, s3, 16")
    a("v_lshlrev_b32 v1, 4, v0")
    a(f"s_mov_b32 s10, {2048*640*2}")
    a("s_mov_b32 s11, 0x00020000")
    a("s_waitcnt lgkmcnt(0)")
    for q in range(8):
        a(f"buffer_load_dwordx4 v[{8+4*q}:{11+4*q}], v1, s[8:11], s3 offen")
        a("s_add_u32 s3, s3, 8192")
    a.label("L_prep_end")
    a.end(K, 128)
    a.launch(K, 200, 512, 0)

def gen_conv():
    K = "conv_kernel"
    CS = 4160
    UOFF = 8 * CS
    LDS = UOFF + 95 * 80
    a.begin(K)
    a("s_cmp_ge_u32 s2, 760")
    a("s_cbranch_scc1 L_conv_end")
    a("s_cmp_ge_u32 s2, 640")
    a("s_cbranch_scc1 L_cw_w")
    a.code_pf(["lnx0_kernel"], 1, 108)
    a(f"s_load_dwordx4 s[24:27], s[0:1], {KA['ssm_k']}")
    a(f"s_load_dwordx2 s[4:5], s[0:1], {KA['ws']}")
    a(f"s_load_dwordx2 s[36:37], s[0:1], {KA['w_sp']}")
    a("s_lshl_b32 s3, s2, 12")
    a("s_waitcnt lgkmcnt(0)")
    a("s_add_u32 s24, s24, s3")
    a("s_addc_u32 s25, s25, 0")
    a.srd(8, 24, 25, 4096)
    a(f"s_mul_i32 s3, s2, {L.TS}")
    a("s_add_u32 s4, s4, s3")
    a("s_addc_u32 s5, s5, 0")
    a.srd(12, 4, 5, 4096, L.URT)
    a.srd(16, 4, 5, 4096, L.YT)
    a("s_and_b32 s6, s2, 0xfffffffe")
    a("s_lshl_b32 s6, s6, 1")
    a("s_load_dword s28, s[26:27], s6")
    a("v_lshlrev_b32 v2, 4, v0")
    a("buffer_load_dwordx4 v[48:51], v2, s[12:15], 0 offen")
    a("v_subrev_u32 v3, 80, v2")
    a("v_subrev_u32 v4, 64, v2")
    a("buffer_load_dwordx4 v[16:19], v3, s[8:11], 0 offen")
    a("buffer_load_dwordx4 v[20:23], v4, s[8:11], 0 offen")
    a("v_add_u32 v7, 4016, v2")
    a("buffer_load_dwordx4 v[56:59], v7, s[8:11], 0 offen")
    a("buffer_load_dwordx4 v[60:63], v7, s[8:11], 0 offen offset:16")
    a(f"s_mov_b32 s38, {2048*2048*2}")
    a("s_mov_b32 s39, 0x00020000")
    a("s_lshl_b32 s3, s2, 14")
    for q in range(4):
        a(f"buffer_load_dwordx4 v[{96+4*q}:{99+4*q}], v2, s[36:39], s3 offen")
        a("s_add_u32 s3, s3, 4096")
    def hfill(addr, B):
        for i in range(6):
            a(f"v_mov_b32 v{24+i}, v{B+1+i}")
        for i in range(7):
            a(f"v_alignbit_b32 v{30+i}, v{B+1+i}, v{B+i}, 16")
        for i in range(6):
            a(f"v_alignbit_b32 v{38+i}, v{B+2+i}, v{B+1+i}, 16")
        src = {0: 30, 2: 38, 4: 32, 6: 40, 1: 24, 3: B + 2, 5: 26, 7: B + 4}
        for j in range(8):
            a(f"ds_write_b128 v{addr}, v[{src[j]}:{src[j]+3}] offset:{j*CS}")
    a("v_lshrrev_b32 v5, 2, v0")
    a("v_mul_u32_u24 v5, 80, v5")
    a("v_and_b32 v6, 3, v0")
    a("v_lshl_add_u32 v5, v6, 4, v5")
    a("v_mov_b32 v52, 0"); a("v_mov_b32 v53, 0"); a("v_mov_b32 v54, 0"); a("v_mov_b32 v55, 0")
    a("v_cmp_gt_u32 vcc, 124, v0")
    a("s_and_saveexec_b64 s[30:31], vcc")
    a(f"ds_write_b128 v5, v[52:55] offset:{UOFF + 64*80}")
    a("s_mov_b64 exec, s[30:31]")
    a("s_waitcnt vmcnt(8)")
    a(f"ds_write_b128 v5, v[48:51] offset:{UOFF}")
    a("s_waitcnt vmcnt(6)")
    hfill(2, 16)
    a("v_add_u32 v7, 4096, v2")
    a("s_waitcnt vmcnt(4)")
    a("v_cmp_gt_u32 vcc, 4, v0")
    a("s_and_saveexec_b64 s[30:31], vcc")
    hfill(7, 56)
    a("s_mov_b64 exec, s[30:31]")
    a("v_and_b32 v1, 31, v0")
    a("v_bfe_u32 v2, v0, 5, 1")
    a("v_lshrrev_b32 v3, 6, v0")
    a("v_and_b32 v4, 7, v1")
    a(f"v_mul_u32_u24 v4, {CS}, v4")
    a("v_lshrrev_b32 v5, 3, v1")
    a("v_add_u32 v5, v5, v2")
    a("v_lshl_add_u32 v4, v5, 4, v4")
    a("v_lshl_add_u32 v4, v3, 9, v4")
    a("v_add_u32 v4, 16, v4")
    a("v_sub_u32 v5, 31, v1")
    a("v_mul_u32_u24 v5, 80, v5")
    a("v_lshl_add_u32 v5, v2, 4, v5")
    a("v_mul_u32_u24 v6, 640, v3")
    a("v_add_u32 v5, v5, v6")
    a(f"v_add_u32 v5, {UOFF}, v5")
    for i in range(32):
        a(f"v_mov_b32 v{64+i}, 0")
    a("s_waitcnt lgkmcnt(0)")
    a("s_barrier")
    steps = [(dl, c0) for dl in range(8) for c0 in (0, 16)]
    def reads(k, base):
        dl, c0 = steps[k]
        oa = 64 * dl + (32 if c0 == 0 else 0)
        ob = 80 * dl + (32 if c0 == 0 else 0)
        a(f"ds_read_b128 v[{base}:{base+3}], v4 offset:{oa}")
        a(f"ds_read_b128 v[{base+4}:{base+7}], v5 offset:{ob+2560}")
        a(f"ds_read_b128 v[{base+8}:{base+11}], v5 offset:{ob}")
        a(f"ds_read_b128 v[{base+12}:{base+15}], v4 offset:{oa+2048}")
    reads(0, 16)
    for k in range(16):
        base = 16 + 16 * (k & 1)
        if k + 1 < 16:
            reads(k + 1, 16 + 16 * ((k + 1) & 1))
            a("s_waitcnt lgkmcnt(4)")
        else:
            a("s_waitcnt lgkmcnt(0)")
        a(f"v_mfma_f32_32x32x16_bf16 v[64:79], v[{base}:{base+3}], v[{base+4}:{base+7}], v[64:79]")
        a(f"v_mfma_f32_32x32x16_bf16 v[80:95], v[{base}:{base+3}], v[{base+8}:{base+11}], v[80:95]")
        a(f"v_mfma_f32_32x32x16_bf16 v[80:95], v[{base+12}:{base+15}], v[{base+4}:{base+7}], v[80:95]")
    a("s_nop 15")
    a("s_barrier")
    a("v_and_b32 v6, 63, v0")
    a("v_lshlrev_b32 v6, 4, v6")
    a("v_lshl_add_u32 v7, v3, 13, v6")
    for q in range(8):
        a(f"ds_write_b128 v7, v[{64+4*q}:{67+4*q}] offset:{q*1024}")
    a("v_lshl_add_u32 v8, v3, 11, v6")
    a("s_waitcnt lgkmcnt(0)")
    a("s_barrier")
    for ww in range(4):
        for qq in range(2):
            r = 16 + (ww * 2 + qq) * 4
            a(f"ds_read_b128 v[{r}:{r+3}], v8 offset:{ww*8192 + qq*1024}")
    a("v_lshrrev_b32 v9, 1, v3")
    a("v_lshlrev_b32 v9, 10, v9")
    a("v_lshl_add_u32 v9, v1, 5, v9")
    a("v_and_b32 v10, 1, v3")
    a("v_lshl_add_u32 v9, v10, 4, v9")
    a("v_lshl_add_u32 v9, v2, 2, v9")
    for qq in range(2):
        a(f"v_sub_u32 v10, {2044 - 8*qq}, v9")
        a("v_lshrrev_b32 v11, 5, v10")
        a("v_mul_u32_u24 v11, 80, v11")
        a("v_and_b32 v10, 31, v10")
        a("v_lshl_add_u32 v11, v10, 1, v11")
        a(f"ds_read_b64 v[{48+2*qq}:{49+2*qq}], v11 offset:{UOFF}")
    a("s_and_b32 s6, s2, 1")
    a("s_cmp_eq_u32 s6, 1")
    a("s_cbranch_scc1 L_conv_odd")
    a("s_lshl_b32 s28, s28, 16")
    a.label("L_conv_odd")
    a("s_and_b32 s28, s28, 0xffff0000")
    a("s_waitcnt lgkmcnt(0)")
    for qq in range(2):
        for i in range(4):
            r = 16 + qq * 4 + i
            for ww in range(1, 4):
                a(f"v_add_f32 v{r}, v{r}, v{16 + (ww*2+qq)*4 + i}")
    for qq in range(2):
        r = 16 + qq * 4
        rnd2(r, r + 1, 60); rnd2(r + 2, r + 3, 60)
        unpack(55, 54, 48 + 2 * qq)
        unpack(53, 52, 49 + 2 * qq)
        for i in range(4):
            a(f"v_mul_f32 v{52+i}, s28, v{52+i}")
        rnd2(52, 53, 60); rnd2(54, 55, 60)
        for i in range(4):
            a(f"v_add_f32 v{r+i}, v{r+i}, v{52+i}")
        a(f"v_cvt_pk_bf16_f32 v{56+2*qq}, v{r}, v{r+1}")
        a(f"v_cvt_pk_bf16_f32 v{57+2*qq}, v{r+2}, v{r+3}")
    a("v_lshlrev_b32 v9, 1, v9")
    a("buffer_store_dwordx2 v[56:57], v9, s[16:19], 0 offen")
    a("buffer_store_dwordx2 v[58:59], v9, s[16:19], 0 offen offset:16")
    a("s_branch L_conv_end")
    a.label("L_cw_w")
    a("s_cmp_ge_u32 s2, 730")
    a("s_cbranch_scc1 L_cw_touch")
    a(f"s_load_dwordx2 s[4:5], s[0:1], {KA['ws']}")
    a("s_mov_b32 s30, 0x05040100")
    a("s_mov_b32 s31, 0x07060302")
    a("s_cmp_lt_u32 s2, 700")
    a("s_cbranch_scc0 L_cw_c")
    a(f"s_load_dwordx2 s[24:25], s[0:1], {KA['w_in']}")
    a("s_sub_u32 s3, s2, 640")
    a("s_lshl_b32 s3, s3, 10")
    for it in range(4):
        a(f"v_add_u32 v{1+4*it}, s3, v0")
        a(f"v_lshrrev_b32 v{2+4*it}, 8, v{1+4*it}")
        a(f"v_mul_u32_u24 v{2+4*it}, 21846, v{2+4*it}")
        a(f"v_lshrrev_b32 v{2+4*it}, 16, v{2+4*it}")
        a(f"v_mul_u32_u24 v{3+4*it}, 768, v{2+4*it}")
        a(f"v_sub_u32 v{1+4*it}, v{1+4*it}, v{3+4*it}")
        a("s_add_u32 s3, s3, 256")
    a("s_waitcnt lgkmcnt(0)")
    a.srd(8, 24, 25, 640 * 1536 * 2)
    a.srd(20, 4, 5, 640 * 1536 * 2, L.WINB)
    a("s_mov_b32 s34, 3072")
    a("s_mov_b32 s35, 1536")
    a("s_branch L_cw_wc")
    a.label("L_cw_c")
    a(f"s_load_dwordx2 s[24:25], s[0:1], {KA['w_out']}")
    a("s_sub_u32 s3, s2, 700")
    a("s_lshl_b32 s3, s3, 10")
    for it in range(4):
        a(f"v_add_u32 v{1+4*it}, s3, v0")
        a(f"v_mul_u32_u24 v{2+4*it}, 52429, v{1+4*it}")
        a(f"v_lshrrev_b32 v{2+4*it}, 24, v{2+4*it}")
        a(f"v_mul_u32_u24 v{3+4*it}, 320, v{2+4*it}")
        a(f"v_sub_u32 v{1+4*it}, v{1+4*it}, v{3+4*it}")
        a("s_add_u32 s3, s3, 256")
    a("s_waitcnt lgkmcnt(0)")
    a.srd(8, 24, 25, 768 * 640 * 2)
    a.srd(20, 4, 5, 768 * 640 * 2, L.WOUTB)
    a("s_mov_b32 s34, 1280")
    a("s_mov_b32 s35, 640")
    a.label("L_cw_wc")
    for it in range(4):
        v1, v2, v3, v4 = 1 + 4 * it, 2 + 4 * it, 3 + 4 * it, 4 + 4 * it
        a(f"v_lshlrev_b32 v{v3}, 3, v{v2}")
        a(f"v_mul_lo_u32 v{v3}, v{v3}, s34")
        a(f"v_lshl_add_u32 v{v3}, v{v1}, 2, v{v3}")
        for i in range(8):
            a(f"buffer_load_dword v{24+8*it+i}, v{v3}, s[8:11], 0 offen")
            if i < 7:
                a(f"v_add_u32 v{v3}, s34, v{v3}")
        a(f"v_mul_lo_u32 v{v4}, v{v2}, s35")
        a(f"v_lshl_add_u32 v{v4}, v{v1}, 1, v{v4}")
        a(f"v_lshlrev_b32 v{v4}, 4, v{v4}")
    for it in range(4):
        a(f"s_waitcnt vmcnt({24 - 8*it + 2*it})")
        B = 24 + 8 * it
        for m in range(4):
            a(f"v_perm_b32 v{60+8*it+m}, v{B+2*m+1}, v{B+2*m}, s30")
            a(f"v_perm_b32 v{64+8*it+m}, v{B+2*m+1}, v{B+2*m}, s31")
        a(f"buffer_store_dwordx4 v[{60+8*it}:{63+8*it}], v{4+4*it}, s[20:23], 0 offen")
        a(f"buffer_store_dwordx4 v[{64+8*it}:{67+8*it}], v{4+4*it}, s[20:23], 0 offen offset:16")
    a("s_branch L_conv_end")
    a.label("L_cw_touch")
    a("s_sub_u32 s3, s2, 730")
    a(f"s_load_dwordx2 s[8:9], s[0:1], {KA['A_q']}")
    a("s_mul_i32 s3, s3, 98304")
    a("v_lshlrev_b32 v1, 4, v0")
    a(f"s_mov_b32 s10, {2048*640*2}")
    a("s_mov_b32 s11, 0x00020000")
    a("s_waitcnt lgkmcnt(0)")
    for q in range(24):
        a(f"buffer_load_dwordx4 v[{8+4*q}:{11+4*q}], v1, s[8:11], s3 offen")
        a("s_add_u32 s3, s3, 4096")
    a.label("L_conv_end")
    a.end(K, 112)
    a.launch(K, 760, 256, LDS)

def wave_sum(v, sdst):
    a("s_nop 1")
    for sh in (1, 2, 4, 8):
        a(f"v_add_f32_dpp v{v}, v{v}, v{v} row_shr:{sh} row_mask:0xf bank_mask:0xf bound_ctrl:0")
        a("s_nop 1")
    a(f"v_add_f32_dpp v{v}, v{v}, v{v} row_bcast:15 row_mask:0xa bank_mask:0xf")
    a("s_nop 1")
    a(f"v_add_f32_dpp v{v}, v{v}, v{v} row_bcast:31 row_mask:0xc bank_mask:0xf")
    a("s_nop 1")
    a(f"v_readlane_b32 s{sdst}, v{v}, 63")
    a("s_nop 1")

def ln_stats(xs, N, t0, smb, srinv):
    def pr(x): return f"v[{x}:{x+1}]"
    n = len(xs)
    a(f"v_pk_add_f32 {pr(t0)}, {pr(xs[0])}, {pr(xs[2])}")
    for i in range(4, n, 2):
        a(f"v_pk_add_f32 {pr(t0)}, {pr(t0)}, {pr(xs[i])}")
    a(f"v_add_f32 v{t0}, v{t0}, v{t0+1}")
    wave_sum(t0, 40)
    a(f"v_mov_b32 v{t0}, s40")
    a(f"v_mul_f32 v{t0}, {-1.0/N!r}, v{t0}")
    a(f"v_mov_b32 v{t0+1}, v{t0}")
    for i in range(0, n, 2):
        a(f"v_pk_add_f32 {pr(t0+2)}, {pr(xs[i])}, {pr(t0)}")
        if i == 0:
            a(f"v_pk_mul_f32 {pr(t0+4)}, {pr(t0+2)}, {pr(t0+2)}")
        else:
            a(f"v_pk_fma_f32 {pr(t0+4)}, {pr(t0+2)}, {pr(t0+2)}, {pr(t0+4)}")
    a(f"v_add_f32 v{t0+2}, v{t0+4}, v{t0+5}")
    wave_sum(t0 + 2, 41)
    a(f"v_mov_b32 v{t0+1}, s41")
    a(f"v_mul_f32 v{t0+1}, {1.0/N!r}, v{t0+1}")
    rnd2(t0, t0 + 1, t0 + 2)
    a(f"v_add_f32 v{t0+1}, 0x3727c5ac, v{t0+1}")
    rnd2(t0 + 1, t0 + 1, t0 + 2)
    a(f"v_sqrt_f32 v{t0+1}, v{t0+1}")
    a("s_nop 0")
    rnd2(t0 + 1, t0 + 1, t0 + 2)
    a(f"v_rcp_f32 v{t0+2}, v{t0+1}")
    a(f"v_mov_b32 v{t0+1}, v{t0}")
    a(f"v_mov_b32 v{t0+3}, v{t0+2}")

def ln_apply(xs, dst, t0, tmp):
    def pr(x): return f"v[{x}:{x+1}]"
    for i in range(0, len(xs), 2):
        a(f"v_pk_add_f32 {pr(dst[i])}, {pr(xs[i])}, {pr(t0)}")
        rnd2(dst[i], dst[i + 1], tmp)
        a(f"v_pk_mul_f32 {pr(dst[i])}, {pr(dst[i])}, {pr(t0+2)}")
        rnd2(dst[i], dst[i + 1], tmp)

def gen_lnx(K, first):
    a.begin(K)
    E = f"L_{K}_end"
    def pr(x): return f"v[{x}:{x+1}]"
    a("s_cmp_ge_u32 s2, 256")
    a(f"s_cbranch_scc1 {E}")
    a.code_pf(["gemm1_0_kernel"] if first or not GDIAG else ["gemm1_1_kernel"], 1, 92)
    a(f"s_load_dwordx2 s[4:5], s[0:1], {KA['ws']}")
    a(f"s_load_dwordx2 s[6:7], s[0:1], {KA['A_q']}")
    a("s_and_b32 s3, s2, 7")
    a("s_lshl_b32 s3, s3, 5")
    a("s_lshr_b32 s2, s2, 3")
    a("s_add_u32 s2, s2, s3")
    a("v_and_b32 v1, 63, v0")
    a("v_lshrrev_b32 v2, 6, v0")
    a("s_lshl_b32 s3, s2, 3")
    a("s_lshl_b32 s24, s2, 4")
    a(f"v_mul_u32_u24 v3, {L.TS}, v0")
    a(f"v_add_u32 v4, {512*L.TS}, v3")
    a("v_add_u32 v5, s3, v2")
    a("v_mul_u32_u24 v8, 1280, v5")
    a("v_lshl_add_u32 v6, v1, 4, v8")
    a("v_lshl_add_u32 v8, v1, 2, v8")
    a("s_waitcnt lgkmcnt(0)")
    if first:
        a.srd(8, 6, 7, 2048 * 640 * 2)
        a.srd(12, 4, 5, 640 * L.TS, L.YT)
    else:
        a.srd(8, 4, 5, 2048 * 640 * 2, L.X2)
        a.srd(12, 4, 5, 2048 * 640 * 2, L.YR)
    a("buffer_load_dwordx4 v[48:51], v6, s[8:11], 0 offen")
    a("buffer_load_dword v52, v8, s[8:11], 0 offen offset:1024")
    if first:
        a("buffer_load_dwordx4 v[40:43], v3, s[12:15], s24 offen")
        a("buffer_load_dwordx4 v[44:47], v4, s[12:15], s24 offen")
        a.srd(24, 4, 5, 2048 * 640 * 2, L.YR)
    else:
        a("buffer_load_dwordx4 v[40:43], v6, s[12:15], 0 offen")
        a("buffer_load_dword v44, v8, s[12:15], 0 offen offset:1024")
    a.srd(16, 4, 5, 2048 * 640 * 2, L.X1)
    a.srd(20, 4, 5, 2048 * 640 * 2, L.XNB)
    Y = list(range(80, 90))
    X = list(range(60, 70))
    Q = list(range(100, 110))
    a("s_waitcnt vmcnt(2)")
    for i in range(5):
        unpack(X[2 * i], X[2 * i + 1], 48 + i)
    ln_stats(X, 640, 10, 42, 43)
    ln_apply(X, Q, 10, 16)
    if first:
        a("v_lshrrev_b32 v7, 3, v0")
        a("v_lshlrev_b32 v7, 2, v7")
        a("v_lshl_add_u32 v7, v0, 4, v7")
        a("s_waitcnt vmcnt(0)")
        a("ds_write2_b32 v7, v40, v41 offset0:0 offset1:1")
        a("ds_write2_b32 v7, v42, v43 offset0:2 offset1:3")
        a("v_cmp_gt_u32 vcc, 128, v0")
        a("s_and_saveexec_b64 s[30:31], vcc")
        a(f"v_add_u32 v9, {512*16 + 64*4}, v7")
        a("ds_write2_b32 v9, v44, v45 offset0:0 offset1:1")
        a("ds_write2_b32 v9, v46, v47 offset0:2 offset1:3")
        a("s_mov_b64 exec, s[30:31]")
        a("v_mul_u32_u24 v7, 132, v1")
        a("v_lshl_add_u32 v7, v2, 1, v7")
        a("v_lshrrev_b32 v9, 2, v1")
        a("v_lshlrev_b32 v9, 2, v9")
        a("v_lshl_add_u32 v9, v1, 5, v9")
        a("v_lshl_add_u32 v9, v2, 1, v9")
        a("s_waitcnt lgkmcnt(0)")
        a("s_barrier")
        for i in range(8):
            a(f"ds_read_u16_d16_hi v{Y[i]}, v7 offset:{i*16}")
        for i in range(2):
            a(f"ds_read_u16_d16_hi v{Y[8+i]}, v9 offset:{512*16 + 64*4 + i*16}")
        a("s_waitcnt lgkmcnt(0)")
        for i in range(10):
            a(f"v_and_b32 v{Y[i]}, 0xffff0000, v{Y[i]}")
        for i in range(5):
            a(f"v_cvt_pk_bf16_f32 v{112+i}, v{Y[2*i]}, v{Y[2*i+1]}")
        a("buffer_store_dwordx4 v[112:115], v6, s[24:27], 0 offen")
        a("buffer_store_dword v116, v8, s[24:27], 0 offen offset:1024")
    else:
        a("s_waitcnt vmcnt(0)")
        for i in range(5):
            unpack(Y[2 * i], Y[2 * i + 1], 40 + i)
    for i in range(0, 10, 2):
        a(f"v_pk_mul_f32 {pr(Q[i])}, {pr(Q[i])}, {pr(Y[i])}")
        rnd2(Q[i], Q[i + 1], 16)
        a(f"v_pk_add_f32 {pr(X[i])}, {pr(X[i])}, {pr(Q[i])}")
        a(f"v_cvt_pk_bf16_f32 v{120+i//2}, v{X[i]}, v{X[i+1]}")
        unpack(X[i], X[i + 1], 120 + i // 2)
    a("buffer_store_dwordx4 v[120:123], v6, s[16:19], 0 offen")
    a("buffer_store_dword v124, v8, s[16:19], 0 offen offset:1024")
    ln_stats(X, 640, 10, 42, 43)
    ln_apply(X, Q, 10, 16)
    for i in range(0, 10, 2):
        a(f"v_cvt_pk_bf16_f32 v{128+i//2}, v{Q[i]}, v{Q[i+1]}")
    a("v_lshlrev_b32 v7, 15, v1")
    a("v_lshl_add_u32 v7, v5, 4, v7")
    a("buffer_store_dwordx4 v[128:131], v7, s[20:23], 0 offen")
    a("v_lshrrev_b32 v7, 2, v1")
    a("v_lshlrev_b32 v7, 15, v7")
    a("v_lshl_add_u32 v7, v5, 4, v7")
    a("v_and_b32 v9, 3, v1")
    a("v_lshl_add_u32 v7, v9, 2, v7")
    a("v_add_u32 v7, 0x200000, v7")
    a("buffer_store_dword v132, v7, s[20:23], 0 offen")
    a.label(E)
    a.end(K, 136)
    a.launch(K, 256, 512, (640 * 16 + 80 * 4) if first else 0)

def gen_lnz(K):
    a.begin(K)
    E = f"L_{K}_end"
    a("s_cmp_ge_u32 s2, 256")
    a(f"s_cbranch_scc1 {E}")
    a.code_pf([K.replace("lnz", "gemm2_")], 1, 92)
    a(f"s_load_dwordx2 s[4:5], s[0:1], {KA['ws']}")
    a("s_and_b32 s3, s2, 7")
    a("s_lshl_b32 s3, s3, 5")
    a("s_lshr_b32 s2, s2, 3")
    a("s_add_u32 s2, s2, s3")
    a("v_and_b32 v1, 63, v0")
    a("v_lshrrev_b32 v2, 6, v0")
    a("s_lshl_b32 s3, s2, 3")
    a("v_add_u32 v5, s3, v2")
    a("v_mul_u32_u24 v8, 1536, v5")
    a("v_lshl_add_u32 v6, v1, 4, v8")
    a("v_lshl_add_u32 v8, v1, 3, v8")
    a("s_waitcnt lgkmcnt(0)")
    a.srd(8, 4, 5, 2048 * 768 * 2, L.Z2)
    a("buffer_load_dwordx4 v[48:51], v6, s[8:11], 0 offen")
    a("buffer_load_dwordx2 v[52:53], v8, s[8:11], 0 offen offset:1024")
    a.srd(12, 4, 5, 2048 * 768 * 2, L.Z2NB)
    a("v_mul_u32_u24 v7, 132, v1")
    a("v_lshl_add_u32 v7, v2, 1, v7")
    a("v_lshrrev_b32 v9, 1, v1")
    a("v_lshlrev_b32 v9, 2, v9")
    a("v_lshl_add_u32 v9, v1, 6, v9")
    a("v_lshl_add_u32 v9, v2, 1, v9")
    a("s_waitcnt vmcnt(0)")
    X = list(range(60, 72))
    for i in range(6):
        unpack(X[2 * i], X[2 * i + 1], 48 + i)
    ln_stats(X, 768, 10, 42, 43)
    Q = list(range(100, 112))
    ln_apply(X, Q, 10, 16)
    for i in range(8):
        a(f"ds_write_b16_d16_hi v7, v{Q[i]} offset:{i*16}")
    for i in range(4):
        a(f"ds_write_b16_d16_hi v9, v{Q[8+i]} offset:{64*132 + i*16}")
    a("v_lshrrev_b32 v7, 3, v0")
    a("v_lshlrev_b32 v7, 2, v7")
    a("v_lshl_add_u32 v7, v0, 4, v7")
    a("s_mul_i32 s24, s2, 12288")
    a("v_lshlrev_b32 v8, 4, v0")
    a("s_waitcnt lgkmcnt(0)")
    a("s_barrier")
    a("ds_read2_b32 v[20:21], v7 offset0:0 offset1:1")
    a("ds_read2_b32 v[22:23], v7 offset0:2 offset1:3")
    a("v_cmp_gt_u32 vcc, 256, v0")
    a("s_and_saveexec_b64 s[30:31], vcc")
    a(f"v_add_u32 v7, {64*132}, v7")
    a("ds_read2_b32 v[24:25], v7 offset0:0 offset1:1")
    a("ds_read2_b32 v[26:27], v7 offset0:2 offset1:3")
    a("s_waitcnt lgkmcnt(0)")
    a("v_add_u32 v10, 8192, v8")
    a("buffer_store_dwordx4 v[24:27], v10, s[12:15], s24 offen")
    a("s_mov_b64 exec, s[30:31]")
    a("s_waitcnt lgkmcnt(0)")
    a("buffer_store_dwordx4 v[20:23], v8, s[12:15], s24 offen")
    a.label(E)
    a.end(K, 120)
    a.launch(K, 256, 512, 96 * 132)

def main():
    import gemm
    gen_prep()
    gen_conv()
    for layer in range(2):
        sfx = str(layer) if (GDIAG or layer == 0) else None
        gen_lnx(f"lnx{layer}_kernel", layer == 0)
        if sfx is not None:
            n1 = f"gemm1_{sfx}_kernel"; l1 = gemm.gen_gemm1(a, n1)
        a.launch(n1, 256, 512, l1)
        if os.environ.get("DUP") and layer == 0:
            n1b = "gemm1_dup_kernel"; gemm.gen_gemm1(a, n1b); a.launch(n1b, 256, 512, l1)
        if sfx is not None:
            nz = f"lnz{sfx}_kernel"; gen_lnz(nz)
        else:
            a.launch(nz, 256, 512, 96 * 132)
        if sfx is not None:
            n2 = f"gemm2_{sfx}_kernel"; l2 = gemm.gen_gemm2(a, n2)
        a.launch(n2, 256, 512, l2)
        if os.environ.get("DUP") and layer == 0:
            n2b = "gemm2_dup_kernel"; gemm.gen_gemm2(a, n2b); a.launch(n2b, 256, 512, l2)
        n3 = f"gemm3_{layer}_kernel"; l3 = gemm.gen_gemm3(a, n3, layer == 1); a.launch(n3, 256, 512, l3)
        if os.environ.get("DUP") and layer == 0:
            n3b = "gemm3_dup_kernel"; gemm.gen_gemm3(a, n3b, False); a.launch(n3b, 256, 512, l3)
    if os.environ.get("DUMMY"):
        a.begin("nop_kernel"); a.end("nop_kernel", 8)
        for _ in range(int(os.environ["DUMMY"])):
            a.launch("nop_kernel", 8, 64, 0)
    open(sys.argv[1] if len(sys.argv) > 1 else f"cdna_kernels/{NAME}.s", "w").write(a.text())

if __name__ == "__main__":
    import gen
    gen.main()
```
